```python
import torch

def _softmax(x, axis=-1):
    return torch.softmax(x, dim=axis)
def _gelu(x):
    return torch.nn.functional.gelu(x, approximate="tanh")
def _silu(x):
    return torch.nn.functional.silu(x)
def _sigmoid(x):
    return torch.sigmoid(x)
def _layernorm(x, axis=-1, eps=1e-5):
    m = x.mean(dim=axis, keepdim=True)
    v = x.var(dim=axis, keepdim=True, unbiased=False)
    return (x - m) / torch.sqrt(v + eps)
def _scatter_add(tgt, idx, src, axis=0):
    return tgt.clone().index_add_(axis, idx, src)
def _segment_sum(src, seg, n):
    out = torch.zeros((n,) + src.shape[1:], dtype=src.dtype)
    return out.index_add_(0, seg, src)
def _pad(x, pw):
    flat = tuple(v for pair in reversed(pw) for v in pair)
    return torch.nn.functional.pad(x, flat)

kernel_name = 'recurrent_scan__linear_attn_block__swiglu_ffn__prompt'

def setup_inputs():

    _w = (lambda a: (lambda t: t.to(torch.bfloat16) if t.is_floating_point() else t)(torch.as_tensor(a)))
    def _A_setup():
        B, S, D = 1, 2048, 448
        return {
            "x": _w((lambda *s: torch.randn(*s, dtype=torch.bfloat16) * 0.05)(B, S, D)),
            "wqkv": _w((lambda *s: torch.randn(*s, dtype=torch.bfloat16) * 0.05)(D, 3 * D)),
            "wo": _w((lambda *s: torch.randn(*s, dtype=torch.bfloat16) * 0.05)(D, D)),
        }
    _A_in = _A_setup()

    def _B_setup():
        B, S, D, F = 1, 2048, 448, 1792
        return {
            "x": _w((lambda *s: torch.randn(*s, dtype=torch.bfloat16) * 0.05)(B, S, D)),
            "w_gate": _w((lambda *s: torch.randn(*s, dtype=torch.bfloat16) * 0.05)(D, F)),
            "w_up": _w((lambda *s: torch.randn(*s, dtype=torch.bfloat16) * 0.05)(D, F)),
            "w_down": _w((lambda *s: torch.randn(*s, dtype=torch.bfloat16) * 0.05)(F, D)),
        }
    _B_in = _B_setup()

    return {
        "A_x": _A_in["x"],
        "A_wqkv": _A_in["wqkv"],
        "A_wo": _A_in["wo"],
        "B_x": _B_in["x"],
        "B_w_gate": _B_in["w_gate"],
        "B_w_up": _B_in["w_up"],
        "B_w_down": _B_in["w_down"],
    }

def reference(A_x, A_wqkv, A_wo, B_x, B_w_gate, B_w_up, B_w_down):
    def _A_ref(x, wqkv, wo):
        B, S, D = x.shape
        H = 16; Dh = D // H
        qkv = (lambda x, *d: x.permute(*d))((x @ wqkv).reshape(B, S, 3, H, Dh), 2, 0, 3, 1, 4)
        q, k, v = qkv[0], qkv[1], qkv[2]
        phi = lambda t: torch.where(t > 0, t + 1, torch.exp(t)) + 1e-6
        pq, pk = phi(q), phi(k)
        kv = torch.einsum("bhsd,bhse->bhde", pk, v)
        z = torch.einsum("bhsd->bhd", pk)
        num = torch.einsum("bhqd,bhde->bhqe", pq, kv)
        den = torch.einsum("bhqd,bhd->bhq", pq, z)[..., None] + 1e-6
        o = num / den
        return (lambda x, *d: x.permute(*d))(o, 0, 2, 1, 3).reshape(B, S, D) @ wo

    def _B_ref(x, w_gate, w_up, w_down):
        g = _silu(x @ w_gate)
        u = x @ w_up
        return (g * u) @ w_down

    x = A_x
    xn = _layernorm(x, axis=-1)
    s = _A_ref(xn, A_wqkv, A_wo)
    g = _silu(_B_ref(xn, B_w_gate, B_w_up, B_w_down))
    return x + s * g
```

```python
import re

TRANS = ('v_exp_f32', 'v_log_f32', 'v_rcp_f32', 'v_rsq_f32', 'v_sqrt_f32', 'v_sin_f32', 'v_cos_f32')


class I:
    __slots__ = ('txt', 'kind', 'tag', 'need', 'cmt')

    def __init__(self, txt, kind='op', tag=None, need=None, cmt=None):
        self.txt = txt
        self.kind = kind
        self.tag = tag
        self.need = need
        self.cmt = cmt

    def __repr__(self):
        return 'I(%s)' % self.txt


def op(txt, cmt=None):
    return I(txt, 'op', cmt=cmt)


def vm(txt, tag=None):
    return I(txt, 'vm', tag=tag)


def lg(txt, tag=None):
    return I(txt, 'lg', tag=tag)


def wait(vm=None, lg=None, vm0=False, lg0=False):
    if vm is not None and not isinstance(vm, list):
        vm = [vm]
    if lg is not None and not isinstance(lg, list):
        lg = [lg]
    return I('<wait>', 'wait', need=dict(vm=vm or [], lg=lg or [], vm0=vm0, lg0=lg0))


def label(name):
    return I(name + ':', 'label')


def resolve_waits(seq, vm_init=None, lg_init=None):
    vmq = list(vm_init or [])
    lgq = list(lg_init or [])
    out = []
    seen = set(vmq) | set(lgq)
    for ins in seq:
        if ins.kind in ('vm', 'lg'):
            seen.add(ins.tag)
        if ins.kind == 'vm':
            vmq.append(ins.tag)
            out.append(ins)
        elif ins.kind == 'lg':
            lgq.append(ins.tag)
            out.append(ins)
        elif ins.kind == 'wait':
            n = ins.need
            parts = []
            nv = None
            if n['vm0']:
                nv = 0
            for t in n['vm']:
                assert t in seen, 'wait on unknown vm tag %r' % (t,)
                idx = [i for i, x in enumerate(vmq) if x == t]
                if not idx:
                    continue
                k = len(vmq) - 1 - idx[-1]
                nv = k if nv is None else min(nv, k)
            if nv is not None:
                if nv < len(vmq):
                    assert nv <= 63, 'vmcnt %d too large' % nv
                    parts.append('vmcnt(%d)' % nv)
                    vmq = vmq[len(vmq) - nv:] if nv else []
            nl = None
            if n['lg0']:
                nl = 0
            for t in n['lg']:
                assert t in seen, 'wait on unknown lg tag %r' % (t,)
                idx = [i for i, x in enumerate(lgq) if x == t]
                if not idx:
                    continue
                k = len(lgq) - 1 - idx[-1]
                nl = k if nl is None else min(nl, k)
            if nl is not None:
                if nl < len(lgq):
                    if nl > 15:
                        raise AssertionError('lgkmcnt %d too large' % nl)
                    parts.append('lgkmcnt(%d)' % nl)
                    lgq = lgq[len(lgq) - nl:] if nl else []
            if parts:
                out.append(op('s_waitcnt ' + ' '.join(parts)))
        else:
            if ins.kind == 'op' and ins.txt.startswith('s_waitcnt'):
                m = re.search(r'vmcnt\((\d+)\)', ins.txt)
                if m:
                    k = int(m.group(1))
                    vmq = vmq[len(vmq) - k:] if k and k < len(vmq) else ([] if k == 0 else vmq)
                m = re.search(r'lgkmcnt\((\d+)\)', ins.txt)
                if m:
                    k = int(m.group(1))
                    lgq = lgq[len(lgq) - k:] if k and k < len(lgq) else ([] if k == 0 else lgq)
            out.append(ins)
    if len(vmq) > 63:
        pass
    return out


_REG = re.compile(r'\b([vas])\[(\d+):(\d+)\]|\b([vas])(\d+)\b')


def regs_of(tok):
    tok = tok.strip()
    res = set()
    for m in _REG.finditer(tok):
        if m.group(1):
            for i in range(int(m.group(2)), int(m.group(3)) + 1):
                res.add((m.group(1), i))
        else:
            res.add((m.group(4), int(m.group(5))))
    if re.search(r'\bvcc\b', tok):
        res.add(('s', 'vcc'))
    if re.search(r'\bm0\b', tok):
        res.add(('s', 'm0'))
    if re.search(r'\bexec\b', tok):
        res.add(('s', 'exec'))
    return res


def split_ops(txt):
    txt = txt.split(';')[0].strip()
    parts = txt.split(None, 1)
    mn = parts[0]
    if len(parts) == 1:
        return mn, []
    rest = parts[1]
    toks = []
    depth = 0
    cur = ''
    for ch in rest:
        if ch == '[':
            depth += 1
        if ch == ']':
            depth -= 1
        if ch == ',' and depth == 0:
            toks.append(cur.strip())
            cur = ''
        else:
            cur += ch
    toks.append(cur.strip())
    return mn, toks


class Info:
    __slots__ = ('mn', 'cls', 'defs', 'uses', 'srcC', 'srcAB', 'store_data', 'passes')


def analyse(txt):
    mn, t = split_ops(txt)
    inf = Info()
    inf.mn = mn
    inf.defs = set()
    inf.uses = set()
    inf.srcC = set()
    inf.srcAB = set()
    inf.store_data = set()
    inf.passes = 0
    first = lambda tok: tok.split()[0] if tok else tok
    if mn.startswith('v_mfma'):
        inf.cls = 'mfma'
        inf.passes = 8 if '32x32' in mn else 4
        inf.defs = regs_of(t[0])
        inf.srcAB = regs_of(t[1]) | regs_of(t[2])
        inf.srcC = regs_of(first(t[3]))
        inf.uses = inf.srcAB | inf.srcC
    elif mn.startswith('v_cmp'):
        inf.cls = 'valu'
        inf.defs = regs_of(t[0])
        inf.uses = set().union(*[regs_of(x) for x in t[1:]])
    elif mn.startswith('v_permlane32_swap') or mn.startswith('v_permlane16_swap'):
        inf.cls = 'valu'
        inf.defs = regs_of(t[0]) | regs_of(t[1])
        inf.uses = set(inf.defs)
    elif mn.startswith('v_readfirstlane') or mn.startswith('v_readlane'):
        inf.cls = 'valu'
        inf.defs = regs_of(t[0])
        inf.uses = set().union(*[regs_of(x) for x in t[1:]])
    elif mn.startswith('v_'):
        inf.cls = 'valu'
        inf.defs = regs_of(t[0])
        srcs = t[1:]
        if mn.startswith(('v_add_co', 'v_sub_co', 'v_addc_co', 'v_subb_co')):
            inf.defs |= regs_of(t[1])
            srcs = t[2:]
        inf.uses = set().union(*[regs_of(x) for x in srcs]) if srcs else set()
        if mn.startswith(('v_fmac', 'v_dot2c', 'v_pk_fmac', 'v_writelane')):
            inf.uses |= inf.defs
        if mn.startswith('v_cndmask') and len(t) == 3:
            inf.uses.add(('s', 'vcc'))
    elif mn.startswith('ds_'):
        inf.cls = 'ds'
        if mn.startswith(('ds_read', 'ds_bpermute', 'ds_permute', 'ds_swizzle')):
            inf.defs = regs_of(t[0])
            inf.uses = set().union(*[regs_of(first(x)) for x in t[1:]])
        else:
            inf.uses = set().union(*[regs_of(first(x)) for x in t])
    elif mn.startswith('buffer_') or mn.startswith('global_'):
        inf.cls = 'vmem'
        is_lds = txt.split(';')[0].rstrip().endswith(' lds') or ' lds ' in txt or mn.startswith('global_load_lds')
        if mn in ('buffer_inv', 'buffer_wbl2'):
            pass
        elif 'load' in mn and not is_lds:
            inf.defs = regs_of(t[0])
            inf.uses = set().union(*[regs_of(first(x)) for x in t[1:]])
        elif is_lds:
            inf.uses = set().union(*[regs_of(first(x)) for x in t]) | {('s', 'm0')}
            inf.cls = 'dma'
        elif mn.startswith('buffer_store'):
            inf.uses = set().union(*[regs_of(first(x)) for x in t])
            if 'x4' in mn or 'x3' in mn:
                inf.store_data = regs_of(t[0])
        elif mn.startswith('global_store'):
            inf.uses = set().union(*[regs_of(first(x)) for x in t])
            if 'x4' in mn or 'x3' in mn:
                inf.store_data = regs_of(t[1])
        else:
            inf.uses = set().union(*[regs_of(first(x)) for x in t])
            if 'sc0' in txt and 'atomic' in mn:
                inf.defs = regs_of(t[0])
    elif mn.startswith('s_'):
        inf.cls = 'salu'
        if mn.startswith(('s_cmp', 's_cbranch', 's_branch', 's_waitcnt', 's_nop', 's_barrier', 's_endpgm', 's_sleep',
                          's_setprio')):
            inf.uses = set().union(*[regs_of(x) for x in t]) if t else set()
        else:
            inf.defs = regs_of(t[0]) if t else set()
            inf.uses = set().union(*[regs_of(x) for x in t[1:]]) if len(t) > 1 else set()
            if 'saveexec' in mn:
                inf.defs.add(('s', 'exec'))
    else:
        raise ValueError('unknown instruction ' + txt)
    return inf


def nop_states(txt):
    m = re.match(r's_nop\s+(\d+)', txt)
    return int(m.group(1)) + 1 if m else 1


def need_states(p, c):
    n = 0
    vdefs = {r for r in p.defs if r[0] in 'va'}
    sdefs = {r for r in p.defs if r[0] == 's'}
    if p.cls == 'valu':
        if c.cls == 'mfma' and vdefs & c.uses:
            n = max(n, 2)
        if c.cls == 'valu':
            if c.mn.startswith(('v_permlane32_swap', 'v_permlane16_swap')) and vdefs & c.uses:
                n = max(n, 2)
            if c.mn.startswith(('v_readfirstlane', 'v_readlane')) and vdefs & c.uses:
                n = max(n, 1)
            if ('_dpp' in c.mn or 'dpp' in getattr(c, 'mn', '')) and vdefs & c.uses:
                n = max(n, 2)
            if p.mn.startswith(TRANS) and vdefs & c.uses:
                n = max(n, 1)
            if p.mn.startswith('v_dot2') and (vdefs & (c.uses | c.defs)):
                if c.mn != p.mn:
                    n = max(n, 3)
                elif vdefs & (c.uses - c.defs):
                    n = max(n, 3)
            if sdefs & c.uses:
                n = max(n, 4 if c.mn.startswith(('v_readlane', 'v_writelane')) else 2)
            if ('sdwa' in p.mn) and vdefs & (c.uses | c.defs):
                n = max(n, 1)
        if c.cls in ('vmem', 'dma') and sdefs & c.uses:
            n = max(n, 5)
        if c.cls in ('vmem', 'ds', 'dma') and p.mn.startswith('v_dot2') and vdefs & c.uses:
            n = max(n, 3)
        if c.cls == 'salu' and sdefs & c.uses and not c.mn.startswith('s_nop'):
            n = max(n, 1)
    if p.cls == 'mfma':
        big = {8: 12, 4: 8}[p.passes]
        ovl = {8: 10, 4: 6}[p.passes]
        if c.cls == 'mfma':
            if vdefs & c.srcAB:
                n = max(n, big)
            if vdefs & c.srcC and not (c.srcC == vdefs and c.passes == p.passes):
                n = max(n, ovl)
            if vdefs & c.defs and c.defs != vdefs and not (vdefs & c.srcC):
                n = max(n, ovl)
        elif c.cls == 'valu':
            if vdefs & (c.uses | c.defs):
                n = max(n, big)
            if p.srcC & c.defs:
                n = max(n, {8: 7, 4: 3}[p.passes])
        elif c.cls in ('vmem', 'ds', 'dma'):
            if vdefs & (c.uses | c.defs):
                n = max(n, big)
    if p.cls == 'salu' and ('s', 'm0') in sdefs and c.cls == 'dma':
        n = max(n, 1)
    if p.cls == 'vmem' and p.store_data:
        if c.cls == 'valu' and p.store_data & c.defs:
            n = max(n, 2)
        elif c.cls in ('ds', 'vmem', 'mfma') and p.store_data & c.defs:
            n = max(n, 1)
    if p.cls == 'salu' and ('s', 'exec') in sdefs and c.cls == 'mfma':
        n = max(n, 4)
    return n


def pad_hazards(seq, window=24, stats=None):
    out = []
    hist = []
    for ins in seq:
        if ins.kind in ('label', 'raw'):
            out.append(ins)
            continue
        c = analyse(ins.txt)
        need = 0
        for (p, dist) in hist:
            k = need_states(p, c)
            if k > dist:
                need = max(need, k - dist)
        if need:
            if stats is not None:
                stats['nops'] = stats.get('nops', 0) + 1
                stats['nop_states'] = stats.get('nop_states', 0) + need
                stats.setdefault('where', []).append((need, ins.txt))
            rem = need
            while rem > 0:
                k = min(rem, 16)
                out.append(op('s_nop %d' % (k - 1)))
                rem -= k
            hist = [(p, d + need) for (p, d) in hist]
        out.append(ins)
        st = nop_states(ins.txt)
        hist = [(p, d + st) for (p, d) in hist if d + st < window]
        hist.append((c, 0))
    return out


def render(seq):
    lines = []
    for ins in seq:
        if ins.kind == 'label':
            lines.append(ins.txt)
        elif ins.kind == 'raw':
            lines.append(ins.txt)
        else:
            assert ins.kind != 'wait'
            lines.append('    ' + ins.txt + (('  ; ' + ins.cmt) if ins.cmt else ''))
    return '\n'.join(lines) + '\n'


def finish(seq, stats=None):
    return render(pad_hazards(resolve_waits(seq), stats=stats))


def interleave(main, side, quota):
    out = []
    pos = 0
    for g, grp in enumerate(main):
        out.extend(grp)
        q = quota(g) if callable(quota) else quota
        while q > 0 and pos < len(side):
            ins = side[pos]
            out.append(ins)
            pos += 1
            if ins.kind != 'wait':
                q -= 1
    out.extend(side[pos:])
    return out
```

```python
import sys
from asmlib import *

NAME = 'recurrent_scan__linear_attn_block__swiglu_ffn__prompt_kernel'

H_OFF = 0
PQ_OFF = 0x700000
KVP_OFF = 0x900000
KVF_OFF = 0xA00000
FP_OFF = 0xA10000
FR_OFF = 0xA12000
FH_OFF = 0xA14000
EPOCH_OFF = 0xA20000
PROF_OFF = 0xB00000
WS_SIZE = 0xC00000

X_BYTES = 2048 * 896
QKV_BYTES = 448 * 2688
WO_BYTES = 448 * 896
WG_BYTES = 448 * 3584
WD_BYTES = 1792 * 896

LOG2E = 0x3fb8aa3b
NLOG2E = 0xbfb8aa3b
EPS6 = 0x358637bd
EPS5 = 0x3727c5ac
INV448 = 0x3b124925
LDS_BYTES = 163840
SPIN_LIMIT = 0x40000

PROF = False
OPT = {}
_stamps = []


def v(a, n=1):
    return 'v%d' % a if n == 1 else 'v[%d:%d]' % (a, a + n - 1)


def a(x, n=1):
    return 'a%d' % x if n == 1 else 'a[%d:%d]' % (x, x + n - 1)


def srd(dst, plo, nbytes):
    return [op('s_mov_b32 s%d, s%d' % (dst, plo)), op('s_mov_b32 s%d, s%d' % (dst + 1, plo + 1)),
            op('s_mov_b32 s%d, 0x%x' % (dst + 2, nbytes)), op('s_mov_b32 s%d, 0x20000' % (dst + 3))]


def mfma(d, A, B, c):
    return op('v_mfma_f32_32x32x16_bf16 %s, %s, %s, %s' % (d, A, B, c))


def stamp(name):
    if not PROF:
        return []
    if name in _stamps:
        i = _stamps.index(name)
    else:
        i = len(_stamps)
        _stamps.append(name)
    mn = 's_memtime' if name.startswith('cyc') else 's_memrealtime'
    return [op('%s s[%d:%d]' % (mn, S_PROF + 2 * i, S_PROF + 2 * i + 1))]


def stamp_flush():
    if not PROF:
        return []
    n = len(_stamps)
    assert S_PROF + 2 * n <= 102
    c = [op('s_waitcnt lgkmcnt(0)')]
    c += [op('s_lshl_b32 s%d, s2, 2' % S_TMP), op('s_add_u32 s%d, s%d, s%d' % (S_TMP, S_TMP, S_W)),
          op('s_lshl_b32 s%d, s%d, 8' % (S_TMP, S_TMP)), op('s_add_u32 s%d, s%d, 0x%x' % (S_TMP, S_TMP, PROF_OFF))]
    for i in range(n):
        c += [op('v_mov_b32 v4, s%d' % (S_PROF + 2 * i)), op('v_mov_b32 v5, s%d' % (S_PROF + 2 * i + 1)),
              vm('buffer_store_dwordx2 v[4:5], off, s[%d:%d], s%d offset:%d' % (SWS, SWS + 3, S_TMP, 8 * i), 'prof'),
              op('s_nop 1')]
    return c


P_X, P_QKV, P_WO, P_WG, P_WU, P_WD, P_OUT, P_DBG, P_WS = 4, 6, 8, 12, 14, 16, 18, 20, 22
SX, SQ, SW, SWS, SD, SO, SOUT = 24, 28, 32, 36, 40, 44, 48
S_W, S_RB, S_XH, S_C8, S_HEAD, S_T = 52, 53, 54, 55, 56, 57
S_XO, S_KVO, S_STO, S_STK, S_STO1 = 58, 59, 60, 61, 62
S_M0W, S_TMP, S_TMP2, S_HO, S_NONCE, S_CNT = 63, 64, 65, 66, 67, 68
S_IDX = 69
B_TG, B_KH, B_NB, B_T, B_WOF, B_WOF2, B_HO, B_XO, B_PO, B_KO, B_FH = 3, 10, 11, 4, 58, 59, 61, 62, 60, 5, 69
S_HS2, S_KR, S_CMP = 6, 7, 12
S_PROF = 70
V_L16 = 1
V_XO = 2
V_XR = 6
V_KVO, V_WO = 10, 11
V_RA = 12
V_KVR = 24
V_C1, V_VV, V_RS, V_RS2, V_MLO, V_CV = 26, 27, 28, 29, 30, 31
V_T = 32
V_CM = 48
V_RST = 48
V_AV = 64
V_D0, V_D1 = 80, 96
V_RS2T = 80
V_KVD = 96
V_A1, V_A2 = 112, 116
V_NONCE, V_PA, V_POLL = 120, 121, 124
V_RED = 112
V_AK = 128
V_ACC = [192, 128]
V_RAW = 144
A_XF = 0
A_FR = [112, 128]
XB = 49152
TAB = 57344
KVRED = 49152
RING = [4, 5, 6, 7, 8, 9, 0, 1, 2]
NCH_A = 14
NCH = 32
BV_WO = 24
BV_RA = 6
BV_XO = 25
BV_F, BV_S, BV_N = 128, 160, 80
BV_X = 48
BA_H = 144
BA_FR = [112, 120]
BA_PQ = 0


def ba_kv(hd):
    return 64 + 8 * hd if hd < 6 else 128 + 8 * (hd - 6)


def slot_addr(g):
    return 16384 * RING[g % 9]


_spins = []


def poll_issue(tag, soff_reg, nregs=1, off=0, dst=None):
    dst = V_POLL if dst is None else dst
    mn = {1: 'buffer_load_dword', 4: 'buffer_load_dwordx4'}[nregs]
    return [vm('%s %s, v%d, s[%d:%d], s%d offen offset:%d sc1' % (mn, v(dst, nregs), V_PA, SWS, SWS + 3, soff_reg, off), tag)]


def poll_check(tag, name, soff_reg, nregs=1, off=0, dst=None):
    dst = V_POLL if dst is None else dst

    def cmp():
        r = [op('v_cmp_ne_u32 vcc, s%d, v%d' % (S_NONCE, dst))]
        for i in range(1, nregs):
            r += [op('v_cmp_ne_u32 s[%d:%d], s%d, v%d' % (S_CMP, S_CMP + 1, S_NONCE, dst + i)),
                  op('s_or_b64 vcc, vcc, s[%d:%d]' % (S_CMP, S_CMP + 1))]
        return r
    mn = {1: 'buffer_load_dword', 4: 'buffer_load_dwordx4'}[nregs]
    spin = [label('LS_%s' % name), op('s_nop 4'), op('s_mov_b32 s%d, 0x%x' % (S_CNT, SPIN_LIMIT)), label('LS_%s_l' % name),
            op('%s %s, v%d, s[%d:%d], s%d offen offset:%d sc1' % (mn, v(dst, nregs), V_PA, SWS, SWS + 3, soff_reg, off)),
            op('s_waitcnt vmcnt(0)')] + cmp() + [
            op('s_cbranch_vccz LB_%s' % name), op('s_sleep 1'),
            op('s_sub_u32 s%d, s%d, 1' % (S_CNT, S_CNT)), op('s_cbranch_scc0 LS_%s_l' % name), op('s_branch LB_%s' % name)]
    _spins.append((name, spin))
    return [wait(vm=tag)] + cmp() + [op('s_cbranch_vccnz LS_%s' % name), label('LB_%s' % name), op('s_nop 4')]


def flag_store(soff_reg, off=0):
    return [vm('buffer_store_dword v%d, off, s[%d:%d], s%d offset:%d sc1' % (V_NONCE, SWS, SWS + 3, soff_reg, off), 'flag')]


def brow(n):
    return 128 * ((n % 28) // 4) + 64 * (n // 28) + 16 * (n % 4)


BORDER = [('f', n) for n in range(28)] + [('s', m) for m in range(8)] + [('f', n) for n in range(28, 56)] + [('s', m) for m in range(8, 16)]


def dma(g, ks):
    r = [op('s_add_u32 m0, s%d, 0x%x' % (S_M0W, slot_addr(g) + ks * 4096))]
    if g < NCH_A:
        if g * 4 + ks == 28:
            r.append(op('s_mov_b32 s%d, s%d' % (S_STO, S_STO1)))
        else:
            r.append(op('s_add_u32 s%d, s%d, s%d' % (S_STO, S_STO, S_STK)))
        r.append(vm('buffer_load_dwordx4 v%d, s[%d:%d], s%d offen lds' % (V_WO, SW, SW + 3, S_STO), ('st', g)))
        return r
    p = (g - NCH_A) * 4 + ks
    kind, n = BORDER[p]
    if kind == 'f':
        r.append(op('s_add_u32 s%d, s%d, 0x%x' % (S_TMP2, B_WOF, brow(n) * 896)))
        r.append(vm('buffer_load_dwordx4 v%d, s[%d:%d], s%d offen lds' % (BV_WO, SD, SD + 3, S_TMP2), ('st', g)))
    else:
        r.append(op('s_add_u32 s%d, s%d, 0x%x' % (S_TMP2, B_WOF2, (28 * (n >> 1) + 16 * (n & 1)) * 896)))
        r.append(vm('buffer_load_dwordx4 v%d, s[%d:%d], s%d offen lds' % (BV_WO, SO, SO + 3, S_TMP2), ('st', g)))
    return r


def dma_kv(m):
    return [op('s_add_u32 m0, s%d, 0x%x' % (S_M0W, 4096 * m)),
            op('s_add_u32 s%d, s%d, 0x%x' % (S_KVO, S_KVO, 32 * 2688)),
            vm('buffer_load_dwordx4 v%d, s[%d:%d], s%d offen lds' % (V_KVO, SQ, SQ + 3, S_KVO), ('kv', m))]


def rd_kv(ks, t, dst):
    base = 4096 * (ks >> 1) + (ks & 1) * 2048
    return [lg('ds_read_b64_tr_b16 %s, v%d offset:%d' % (a(dst, 2), V_KVR + t, base), ('kvf', ks, t)),
            lg('ds_read_b64_tr_b16 %s, v%d offset:%d' % (a(dst + 2, 2), V_KVR + t, base + 1024), ('kvf', ks, t))]


def rd_st(gk, j, dst):
    addr = slot_addr(gk >> 2) + (gk & 3) * 4096
    reg = V_RA + 4 * (addr >> 16) + j
    off = addr & 0xffff
    return [lg('ds_read_b64_tr_b16 %s, v%d offset:%d' % (a(dst, 2), reg, off), ('stf', gk, j)),
            lg('ds_read_b64_tr_b16 %s, v%d offset:%d' % (a(dst + 2, 2), reg, off + 2048), ('stf', gk, j))]


def rd_b(p, j, dst):
    addr = slot_addr(NCH_A + (p >> 2)) + (p & 3) * 4096
    reg = BV_RA + 2 * (addr >> 16) + j
    off = addr & 0xffff
    return [lg('ds_read_b64_tr_b16 %s, v%d offset:%d' % (a(dst, 2), reg, off), ('wf', p, j)),
            lg('ds_read_b64_tr_b16 %s, v%d offset:%d' % (a(dst + 2, 2), reg, off + 1024), ('wf', p, j))]


def lane_fields():
    KL, FB, C8_, RP = V_T + 4, V_T + 5, V_T + 6, V_T + 7
    return [op('v_bfe_u32 v%d, v0, 2, 2' % RP), op('v_bfe_u32 v%d, v0, 4, 1' % FB),
            op('v_lshrrev_b32 v%d, 5, v0' % KL), op('v_lshl_add_u32 v%d, v%d, 2, v%d' % (KL, KL, RP)),
            op('v_and_b32 v%d, 3, v0' % C8_), op('v_lshlrev_b32 v%d, 3, v%d' % (C8_, C8_))]


def prologue():
    c = [op('s_cmp_ge_u32 s2, 256'), op('s_cbranch_scc1 L_done')]
    c += stamp('entry') + stamp('cyc0')
    c += [op('s_load_dwordx4 s[4:7], s[0:1], 0'), op('s_load_dwordx4 s[20:23], s[0:1], 64'),
          op('s_load_dwordx4 s[12:15], s[0:1], 32'), op('s_load_dwordx4 s[16:19], s[0:1], 48'),
          op('s_load_dwordx2 s[8:9], s[0:1], 16')]
    c += [op('v_lshrrev_b32 v1, 6, v0'), op('v_and_b32 v0, 63, v0'), op('v_readfirstlane_b32 s%d, v1' % S_W)]
    T0, T1, T2 = V_T, V_T + 1, V_T + 2
    c += [op('v_lshrrev_b32 v%d, 3, v0' % T0), op('v_and_b32 v%d, 7, v0' % T1),
          op('v_xor_b32 v%d, v%d, v%d' % (T1, T1, T0)), op('v_lshlrev_b32 v%d, 4, v%d' % (T1, T1)),
          op('v_mul_u32_u24 v%d, 896, v%d' % (T2, T0)),
          op('v_add_u32 v%d, v%d, v%d' % (V_XO, T2, T1)), op('v_add_u32 v%d, 6144, v%d' % (V_XO + 1, V_XO)),
          op('v_xor_b32 v%d, 16, v%d' % (T1, T1)), op('v_add_u32 v%d, v%d, v%d' % (V_XO + 2, T2, T1)),
          op('v_add_u32 v%d, 12288, v%d' % (V_XO + 2, V_XO + 2)), op('v_add_u32 v%d, 6144, v%d' % (V_XO + 3, V_XO + 2))]
    c += [op('s_and_b32 s%d, s2, 3' % S_RB), op('s_lshl_b32 s%d, s%d, 2' % (S_RB, S_RB)),
          op('s_lshr_b32 s%d, s2, 3' % S_IDX), op('s_and_b32 s%d, s%d, 3' % (S_TMP, S_IDX)),
          op('s_add_u32 s%d, s%d, s%d' % (S_RB, S_RB, S_TMP)),
          op('s_lshl_b32 s%d, s%d, 2' % (S_T, S_RB)), op('s_add_u32 s%d, s%d, s%d' % (S_T, S_T, S_W)),
          op('s_mul_i32 s%d, s%d, %d' % (S_XO, S_T, 32 * 896)),
          op('s_mul_i32 s%d, s%d, 28672' % (S_TMP2, S_W)), op('s_add_u32 s%d, s%d, %d' % (S_TMP2, S_TMP2, XB))]
    c += [op('s_lshl_b32 s%d, s2, 2' % S_CNT), op('s_add_u32 s%d, s%d, s%d' % (S_CNT, S_CNT, S_W))]
    c += [op('s_waitcnt lgkmcnt(0)')]
    c += [op('v_mov_b32 v%d, 0x%x' % (V_PA, EPOCH_OFF)), op('v_mov_b32 v%d, 0' % V_NONCE),
          op('s_cmp_lg_u32 s%d, 0' % S_CNT), op('s_cbranch_scc1 L_notag1'),
          op('global_load_dword v%d, v%d, s[%d:%d] sc1' % (V_NONCE, V_PA, P_WS, P_WS + 1)),
          label('L_notag1')]
    c += srd(SX, P_X, X_BYTES)
    for i in range(7):
        c += [op('s_add_u32 m0, s%d, %d' % (S_TMP2, 4096 * i))]
        for q in range(4):
            c += [vm('buffer_load_dwordx4 v%d, s[%d:%d], s%d offen offset:%d lds' % (V_XO + q, SX, SX + 3, S_XO, 1024 * q), ('x', i))]
        if i < 6:
            c += [op('s_add_u32 s%d, s%d, 128' % (S_XO, S_XO))]
    c += stamp('xiss')
    c += [op('s_bfe_u32 s%d, s2, 0x10002' % S_XH), op('s_lshr_b32 s%d, s%d, 2' % (S_C8, S_IDX)),
          op('s_lshl_b32 s%d, s%d, 3' % (S_HEAD, S_XH)), op('s_add_u32 s%d, s%d, s%d' % (S_HEAD, S_HEAD, S_C8)),
          op('s_lshl_b32 s%d, s%d, 10' % (S_M0W, S_W))]
    c += srd(SQ, P_QKV, QKV_BYTES) + srd(SWS, P_WS, WS_SIZE)
    c += [op('v_lshrrev_b32 v%d, 3, v0' % T0), op('v_mul_u32_u24 v%d, 2688, v%d' % (V_KVO, T0)),
          op('v_lshrrev_b32 v%d, 1, v%d' % (T1, T0)), op('v_lshrrev_b32 v%d, 2, v0' % T2),
          op('v_xor_b32 v%d, v%d, v%d' % (T1, T1, T2)), op('v_and_b32 v%d, 1, v%d' % (T1, T1)),
          op('v_mul_u32_u24 v%d, 896, v%d' % (T1, T1)),
          op('v_and_b32 v%d, 3, v0' % T2), op('v_lshlrev_b32 v%d, 4, v%d' % (T2, T2)),
          op('v_add3_u32 v%d, v%d, v%d, v%d' % (V_KVO, V_KVO, T1, T2)), op('v_add_u32 v%d, 896, v%d' % (V_KVO, V_KVO))]
    c += [op('s_mul_i32 s%d, s%d, 56' % (S_KVO, S_HEAD)), op('s_mul_i32 s%d, s%d, %d' % (S_TMP, S_W, 8 * 2688)),
          op('s_add_u32 s%d, s%d, s%d' % (S_KVO, S_KVO, S_TMP)),
          op('s_sub_u32 s%d, s%d, 0x%x' % (S_KVO, S_KVO, 32 * 2688))]
    nkv0 = OPT.get('kv_early', 4)
    for m in range(nkv0):
        c += dma_kv(m)
    F_, KL, FB, C8_, RP = V_T + 3, V_T + 4, V_T + 5, V_T + 6, V_T + 7
    c += [op('v_and_b32 v%d, 31, v0' % T0), op('v_lshrrev_b32 v%d, 5, v0' % T1), op('v_and_b32 v%d, 7, v%d' % (T2, T0)),
          op('v_lshrrev_b32 v%d, 4, v%d' % (F_, T0)), op('v_xor_b32 v%d, v%d, v%d' % (F_, F_, T2)),
          op('v_xor_b32 v%d, v%d, v%d' % (F_, F_, T1)), op('v_lshlrev_b32 v%d, 4, v%d' % (F_, F_)),
          op('v_lshl_add_u32 v%d, v%d, 7, v%d' % (F_, T2, F_)), op('v_lshrrev_b32 v%d, 3, v%d' % (T2, T0)),
          op('v_lshl_add_u32 v%d, v%d, 10, v%d' % (F_, T2, F_)), op('v_add_u32 v%d, s%d, v%d' % (V_XR, S_TMP2, F_))]
    for q in range(1, 4):
        c += [op('v_xor_b32 v%d, %d, v%d' % (V_XR + q, 32 * q, V_XR))]
    c += [op('v_lshlrev_b32 v%d, 3, v%d' % (T1, T1)), op('v_sub_u32 v%d, v%d, v%d' % (T0, T0, T1)),
          op('v_and_b32 v%d, 1, v%d' % (T1, T0)), op('v_lshlrev_b32 v%d, 4, v%d' % (T1, T1)),
          op('v_mov_b32 v%d, 0x3f80' % T2), op('v_lshlrev_b32 v%d, v%d, v%d' % (T2, T1, T2)),
          op('v_ashrrev_i32 v%d, 1, v%d' % (T0, T0))]
    for m in range(4):
        c += [op('v_cmp_eq_u32 vcc, %d, v%d' % (m, T0)), op('v_cndmask_b32 v%d, 0, v%d, vcc' % (V_A1 + m, T2)),
              op('v_cmp_eq_u32 vcc, %d, v%d' % (m + 8, T0)), op('v_cndmask_b32 v%d, 0, v%d, vcc' % (V_A2 + m, T2))]
    c += [op('v_lshlrev_b32 v%d, 4, v0' % V_L16), op('v_cmp_gt_u32 vcc, 32, v0'),
          op('v_cndmask_b32 v%d, 0, -1, vcc' % V_MLO), op('v_and_b32 v%d, 31, v0' % T0),
          op('v_cmp_eq_u32 vcc, 28, v%d' % T0), op('v_mov_b32 v%d, 0x3f803f80' % T1),
          op('v_cndmask_b32 v%d, 0, v%d, vcc' % (V_CV, T1))]
    c += [op('s_cmp_eq_u32 s%d, 7' % S_C8), op('s_cbranch_scc1 L_parq')]
    c += [op('s_and_b32 s%d, s%d, 1' % (S_TMP, S_W)), op('s_cmp_eq_u32 s%d, 0' % S_TMP),
          op('s_cselect_b32 s%d, s%d, s%d' % (SW, P_WG, P_WU)), op('s_cselect_b32 s%d, s%d, s%d' % (SW + 1, P_WG + 1, P_WU + 1)),
          op('s_mov_b32 s%d, 0x%x' % (SW + 2, WG_BYTES)), op('s_mov_b32 s%d, 0x20000' % (SW + 3))]
    c += [op('v_lshrrev_b32 v%d, 3, v0' % T0), op('v_mul_u32_u24 v%d, 3584, v%d' % (V_WO, T0)),
          op('v_lshrrev_b32 v%d, 1, v%d' % (T1, T0)), op('v_and_b32 v%d, 1, v%d' % (T1, T1)),
          op('s_lshl_b32 s%d, s%d, 1' % (S_TMP, S_TMP)), op('v_or_b32 v%d, s%d, v%d' % (T1, S_TMP, T1)),
          op('v_and_b32 v%d, 7, v0' % T2), op('v_lshrrev_b32 v%d, 1, v%d' % (T2, T2)),
          op('v_xor_b32 v%d, v%d, v%d' % (T1, T1, T2)), op('v_lshlrev_b32 v%d, 5, v%d' % (T1, T1)),
          op('v_and_b32 v%d, 1, v0' % T2), op('v_lshlrev_b32 v%d, 4, v%d' % (T2, T2)),
          op('v_add3_u32 v%d, v%d, v%d, v%d' % (V_WO, V_WO, T1, T2))]
    c += [op('s_mul_i32 s%d, s%d, 7' % (S_STO, S_XH)), op('s_add_u32 s%d, s%d, s%d' % (S_STO, S_STO, S_C8)),
          op('s_lshl_b32 s%d, s%d, 8' % (S_STO, S_STO)),
          op('s_lshr_b32 s%d, s%d, 1' % (S_TMP, S_W)), op('s_mul_i32 s%d, s%d, %d' % (S_TMP, S_TMP, 8 * 3584)),
          op('s_add_u32 s%d, s%d, s%d' % (S_STO, S_STO, S_TMP)), op('s_add_u32 s%d, s%d, 128' % (S_STO1, S_STO)),
          op('s_mov_b32 s%d, %d' % (S_STK, 16 * 3584)), op('s_sub_u32 s%d, s%d, s%d' % (S_STO, S_STO, S_STK))]
    c += lane_fields()
    c += [op('v_lshrrev_b32 v%d, 1, v%d' % (F_, RP)), op('v_lshl_or_b32 v%d, v%d, 1, v%d' % (F_, FB, F_)),
          op('v_lshlrev_b32 v%d, 10, v%d' % (T0, FB)), op('v_lshl_add_u32 v%d, v%d, 7, v%d' % (T0, KL, T0)),
          op('v_add_u32 v%d, v%d, v%d' % (T0, T0, C8_))]
    for j in range(4):
        c += [op('v_xor_b32 v%d, %d, v%d' % (T1, j, F_)), op('v_lshl_add_u32 v%d, v%d, 5, v%d' % (V_RA + j, T1, T0))]
    c += [op('s_branch L_pardone'), label('L_parq')]
    c += srd(SW, P_QKV, QKV_BYTES)
    c += [op('v_lshrrev_b32 v%d, 4, v0' % T0), op('v_mul_u32_u24 v%d, 2688, v%d' % (V_WO, T0)),
          op('v_lshlrev_b32 v%d, 2, v%d' % (T1, T0)), op('v_sub_u32 v%d, v0, v%d' % (T1, T1)),
          op('v_and_b32 v%d, 15, v%d' % (T1, T1)), op('v_lshl_add_u32 v%d, v%d, 4, v%d' % (V_WO, T1, V_WO))]
    c += [op('s_mul_i32 s%d, s%d, 448' % (S_STO, S_XH)), op('s_mul_i32 s%d, s%d, %d' % (S_TMP, S_W, 4 * 2688)),
          op('s_add_u32 s%d, s%d, s%d' % (S_STO, S_STO, S_TMP)), op('s_add_u32 s%d, s%d, 224' % (S_STO1, S_STO)),
          op('s_mov_b32 s%d, %d' % (S_STK, 16 * 2688)), op('s_sub_u32 s%d, s%d, s%d' % (S_STO, S_STO, S_STK))]
    c += lane_fields()
    c += [op('v_lshl_add_u32 v%d, v%d, 5, v%d' % (T0, FB, C8_)), op('v_lshl_add_u32 v%d, v%d, 6, v%d' % (T0, RP, T0)),
          op('v_lshlrev_b32 v%d, 8, v%d' % (T2, KL))]
    for j in range(4):
        c += [op('v_add_u32 v%d, %d, v%d' % (T1, 56 * j, T0)), op('v_and_b32 v%d, 255, v%d' % (T1, T1)),
              op('v_add_u32 v%d, v%d, v%d' % (V_RA + j, T1, T2))]
    c += [label('L_pardone')]
    for rg in (1, 2):
        for j in range(4):
            c += [op('v_add_u32 v%d, 0x%x, v%d' % (V_RA + 4 * rg + j, 65536 * rg, V_RA + j))]
    c += lane_fields()
    c += [op('v_lshlrev_b32 v%d, 7, v%d' % (T0, KL)), op('v_lshl_add_u32 v%d, v%d, 5, v%d' % (T0, FB, T0)),
          op('v_add_u32 v%d, v%d, v%d' % (T0, T0, C8_)), op('v_lshrrev_b32 v%d, 1, v%d' % (T1, RP)),
          op('v_lshl_add_u32 v%d, v%d, 6, v%d' % (V_KVR, T1, T0)), op('v_xor_b32 v%d, 64, v%d' % (V_KVR + 1, V_KVR))]
    c += stamp('pro')
    return c


def ln_stats():
    c = []
    S0, S1, Q0, Q1, ONE = V_T, V_T + 1, V_T + 2, V_T + 3, V_T + 4
    c += [op('v_mov_b32 v%d, 0' % r) for r in (S0, S1, Q0, Q1)]
    c += [op('v_mov_b32 v%d, 0x3f803f80' % ONE)]

    def reads(i):
        return [lg('ds_read_b128 %s, v%d offset:%d' % (v(V_RAW + 16 * i + 4 * q, 4), V_XR + q, 4096 * i), ('raw', i))
                for q in range(4)]
    nkv0 = OPT.get('kv_early', 4)
    kvq = list(range(nkv0, 12))
    c += [wait(vm=('x', 0))] + stamp('x0') + reads(0)
    for i in range(7):
        if i < 6:
            c += [wait(vm=('x', i + 1))] + reads(i + 1)
        c += [wait(lg=('raw', i))]
        if i == 6:
            c += [op('s_barrier')]
            while kvq:
                c += dma_kv(kvq.pop(0))
            c += dma_kv(12) + dma_kv(13)
        body = []
        for r in range(16):
            x = V_RAW + 16 * i + r
            body += [op('v_dot2c_f32_bf16 v%d, v%d, v%d' % (S0 if r % 2 == 0 else S1, x, ONE)),
                     op('v_dot2c_f32_bf16 v%d, v%d, v%d' % (Q0 if r % 2 == 0 else Q1, x, x))]
        if i < 6:
            for _ in range(2):
                if kvq:
                    pos = 8 if _ == 0 else 24
                    body[pos:pos] = dma_kv(kvq.pop(0))
        c += body
    c += stamp('stats')
    c += [op('s_lshl_b32 s%d, s2, 2' % S_CNT), op('s_add_u32 s%d, s%d, s%d' % (S_CNT, S_CNT, S_W)),
          op('s_cmp_lg_u32 s%d, 0' % S_CNT), op('s_cbranch_scc1 L_notag2'),
          op('s_mov_b32 s%d, 0x9e3779b1' % S_CNT), op('v_mul_lo_u32 v%d, v%d, s%d' % (V_NONCE, V_NONCE, S_CNT)),
          op('v_add_u32 v%d, 0x7f4a7c15, v%d' % (V_NONCE, V_NONCE)), op('v_or_b32 v%d, 1, v%d' % (V_NONCE, V_NONCE)),
          op('v_mov_b32 v%d, 0' % V_POLL),
          op('global_store_dword v%d, v%d, s[%d:%d] sc1' % (V_PA, V_NONCE, P_WS, P_WS + 1)),
          op('global_store_dword v%d, v%d, s[%d:%d] sc1' % (V_POLL, V_NONCE, P_DBG, P_DBG + 1)),
          op('s_nop 1'),
          label('L_notag2')]
    T5, T6 = V_T + 5, V_T + 6
    c += [op('v_add_f32 v%d, v%d, v%d' % (S0, S0, S1)), op('v_add_f32 v%d, v%d, v%d' % (Q0, Q0, Q1)),
          op('v_mov_b32 v%d, v%d' % (S1, S0)), op('v_mov_b32 v%d, v%d' % (Q1, Q0)),
          op('v_permlane32_swap_b32 v%d, v%d' % (S0, S1)), op('v_permlane32_swap_b32 v%d, v%d' % (Q0, Q1)),
          op('v_add_f32 v%d, v%d, v%d' % (S0, S0, S1)), op('v_add_f32 v%d, v%d, v%d' % (Q0, Q0, Q1)),
          op('v_mul_f32 v%d, 0x%x, v%d' % (S0, INV448 ^ 0x80000000, S0)),
          op('v_mul_f32 v%d, 0x%x, v%d' % (Q0, INV448, Q0))]
    c += [op('v_mov_b32 v%d, v%d' % (V_CM + r, S0)) for r in range(16)]
    tail = [op('v_fma_f32 v%d, -v%d, v%d, v%d' % (Q0, S0, S0, Q0)),
            op('v_max_f32 v%d, 0, v%d' % (Q0, Q0)),
            op('v_add_f32 v%d, 0x%x, v%d' % (V_VV, EPS5, Q0)),
            op('v_rsq_f32 v%d, v%d' % (V_RS, V_VV)),
            op('v_and_b32 v%d, 31, v0' % T5), op('v_lshlrev_b32 v%d, 2, v%d' % (T5, T5)),
            op('v_mul_f32 v%d, 0x%x, v%d' % (V_RS2, LOG2E, V_RS)),
            op('v_mul_f32 v%d, 0x%x, v%d' % (V_C1, NLOG2E, V_RS)),
            op('s_lshl_b32 s%d, s%d, 8' % (S_TMP, S_W)), op('s_add_u32 s%d, s%d, %d' % (S_TMP, S_TMP, TAB)),
            op('v_add_u32 v%d, s%d, v%d' % (T5, S_TMP, T5)),
            lg('ds_write_b32 v%d, v%d' % (T5, V_RS), 'tabw'),
            lg('ds_write_b32 v%d, v%d offset:128' % (T5, V_RS2), 'tabw'),
            op('v_lshrrev_b32 v%d, 5, v0' % T6), op('v_lshlrev_b32 v%d, 4, v%d' % (T6, T6)),
            op('v_add_u32 v%d, s%d, v%d' % (T6, S_TMP, T6))]
    return c, tail


def centre_kv(tail):
    D = [V_D0, V_D1]
    T6 = V_T + 6
    c = []

    def cm(p):
        d = D[p & 1]
        return [mfma(v(d, 16), v(V_A1, 4), v(V_RAW + 8 * p, 4), v(V_CM, 16)),
                mfma(v(d, 16), v(V_A2, 4), v(V_RAW + 8 * p + 4, 4), v(d, 16))]

    def cp(p):
        d = D[p & 1]
        r = []
        for m in range(8):
            t = V_T + 8 + (m & 3)
            r += [op('v_cvt_pk_bf16_f32 v%d, v%d, v%d' % (t, d + 2 * m, d + 2 * m + 1)),
                  op('v_accvgpr_write_b32 a%d, v%d' % (A_XF + 8 * p + m, t))]
        return r
    stq = []
    for g in range(6):
        for ks in range(4):
            stq.append(dma(g, ks))
    late = []
    for p in range(16):
        side = []
        if p == 0:
            side += tail
        if 1 <= p <= 14:
            side += cp(p - 1)
        if p == 14:
            for q in range(4):
                late += [lg('ds_read_b128 %s, v%d offset:%d' % (v(V_RST + 4 * q, 4), T6, 32 * q), 'tabr')]
        main = []
        if p < 14:
            ms = cm(p)
            main += [[ms[0]], [ms[1]]]
        if p == 1:
            main += [[wait(vm=('kv', 11)), op('s_barrier')] + rd_kv(0, 0, A_FR[0]) + rd_kv(0, 1, A_FR[0] + 4)]
        if p >= 2:
            for ks in (2 * (p - 2), 2 * (p - 2) + 1):
                cur, nxt = A_FR[ks & 1], A_FR[(ks + 1) & 1]
                pre = []
                if ks == 23:
                    pre += [wait(vm=('kv', 13)), op('s_barrier')]
                if ks == 27:
                    pre += [wait(vm=('st', 0)), op('s_barrier')]
                g0 = pre + [wait(lg=('kvf', ks, 0)), mfma(v(V_AK, 16), a(A_XF + 4 * ks, 4), a(cur, 4), v(V_AK, 16) if ks else '0')]
                g0 += rd_kv(ks + 1, 0, nxt) if ks < 27 else rd_st(0, 0, nxt) + rd_st(0, 1, nxt + 4)
                g1 = [wait(lg=('kvf', ks, 1)), mfma(v(V_AV, 16), a(A_XF + 4 * ks, 4), a(cur + 4, 4), v(V_AV, 16) if ks else '0')]
                g1 += rd_kv(ks + 1, 1, nxt + 4) if ks < 27 else rd_st(0, 2, nxt + 8) + rd_st(0, 3, nxt + 12)
                main += [g0, g1]
        ndma = 2 if p < 12 else 0
        if p == 0:
            ndma = 2
        d = []
        for _ in range(ndma):
            if stq:
                d.append(stq.pop(0))
        if p == 14:
            d += [dma(6, 0), dma(6, 1)]
        if p == 15:
            d += [dma(6, 2), dma(6, 3)]
        sidel = list(side)
        ng = len(main)
        per = (len(sidel) + ng - 1) // max(ng, 1)
        for gi, grp in enumerate(main):
            c += grp
            if d and gi >= (1 if p >= 2 else 0) and (p not in (14, 15) or gi >= 1):
                c += d.pop(0)
            c += sidel[:per]
            sidel = sidel[per:]
        for x in d:
            c += x
        c += sidel
        if p == 14:
            c += late
    assert not stq
    return c


def tab2_reads():
    T6 = V_T + 6
    return [lg('ds_read_b128 %s, v%d offset:%d' % (v(V_RS2T + 4 * q, 4), T6, 128 + 32 * q), 'tabr2') for q in range(4)]


def kv_epilogue_a():
    AK, AV = V_AK, V_AV
    T = V_T
    c = tab2_reads() + [wait(lg=['tabr', 'tabr2'])]
    for r in range(0, 16, 2):
        k0, k1 = AK + r, AK + r + 1
        c += [op('v_mul_f32 v%d, v%d, v%d' % (T, k0, V_RS2T + r)), op('v_mul_f32 v%d, v%d, v%d' % (T + 1, k1, V_RS2T + r + 1)),
              op('v_min_f32 v%d, 0, v%d' % (T, T)), op('v_min_f32 v%d, 0, v%d' % (T + 1, T + 1)),
              op('v_exp_f32 v%d, v%d' % (T, T)), op('v_exp_f32 v%d, v%d' % (T + 1, T + 1)),
              op('v_fmaak_f32 v%d, v%d, v%d, 0x%x' % (k0, k0, V_RST + r, EPS6)),
              op('v_fmaak_f32 v%d, v%d, v%d, 0x%x' % (k1, k1, V_RST + r + 1, EPS6)),
              op('v_max_f32 v%d, 0x%x, v%d' % (k0, EPS6, k0)), op('v_max_f32 v%d, 0x%x, v%d' % (k1, EPS6, k1)),
              op('v_mul_f32 v%d, v%d, v%d' % (AV + r, AV + r, V_RST + r)),
              op('v_mul_f32 v%d, v%d, v%d' % (AV + r + 1, AV + r + 1, V_RST + r + 1)),
              op('v_add_f32 v%d, v%d, v%d' % (k0, k0, T)), op('v_add_f32 v%d, v%d, v%d' % (k1, k1, T + 1)),
              op('v_cvt_pk_bf16_f32 v%d, v%d, v%d' % (V_RS2T + r // 2, AV + r, AV + r + 1)),
              op('v_cvt_pk_bf16_f32 v%d, v%d, v%d' % (T + 8 + r // 2, k0, k1))]
    PK, PV = T + 8, V_RS2T
    c += [op('v_and_b32 v%d, 31, v0' % T), op('v_cmp_gt_u32 vcc, 28, v%d' % T)]
    for m in range(8):
        c += [op('v_cndmask_b32 v%d, v%d, v%d, vcc' % (PV + m, V_CV, PV + m))]
    D = V_KVD
    c += [op('s_lshl_b32 s%d, s%d, 12' % (S_TMP, S_W)), op('v_add_u32 v%d, s%d, v%d' % (T, S_TMP, V_L16))]
    c += [mfma(v(D, 16), v(PK, 4), v(PV, 4), '0'), mfma(v(D, 16), v(PK + 4, 4), v(PV + 4, 4), v(D, 16))]
    w = [lg('ds_write_b128 v%d, %s offset:%d' % (T, v(D + 4 * q, 4), KVRED + 1024 * q), 'kvw') for q in range(4)]
    return c, w


def kv_epilogue_b():
    D = V_KVD
    T = V_T
    c = [op('v_add_u32 v%d, s%d, v%d' % (T, S_M0W, V_L16))]
    for wv in range(4):
        c += [lg('ds_read_b128 %s, v%d offset:%d' % (v(D + 4 * wv, 4), T, KVRED + 4096 * wv), 'kvr')]
    c += [op('s_lshl_b32 s%d, s%d, 4' % (S_TMP, S_HEAD)), op('s_add_u32 s%d, s%d, s%d' % (S_TMP, S_TMP, S_RB)),
          op('s_lshl_b32 s%d, s%d, 12' % (S_TMP, S_TMP)), op('s_add_u32 s%d, s%d, s%d' % (S_TMP, S_TMP, S_M0W)),
          op('s_add_u32 s%d, s%d, 0x%x' % (S_HO, S_TMP, KVP_OFF))]
    c += [wait(lg='kvr')]
    for r in range(4):
        c += [op('v_add_f32 v%d, v%d, v%d' % (D + r, D + r, D + 4 + r)),
              op('v_add_f32 v%d, v%d, v%d' % (D + 8 + r, D + 8 + r, D + 12 + r))]
    for r in range(4):
        c += [op('v_add_f32 v%d, v%d, v%d' % (D + r, D + r, D + 8 + r))]
    c += [vm('buffer_store_dwordx4 %s, v%d, s[%d:%d], s%d offen sc1' % (v(D, 4), V_L16, SWS, SWS + 3, S_HO), 'kvst')]
    return c


def nonce_issue():
    return [op('v_mov_b32 v%d, 0' % V_PA),
            vm('global_load_dword v%d, v%d, s[%d:%d] sc1' % (V_NONCE, V_PA, P_DBG, P_DBG + 1), 'nonce')]


def nonce_check():
    spin = [label('LS_nonce'), op('s_nop 4'), op('s_mov_b32 s%d, 0x%x' % (S_CNT, SPIN_LIMIT)), label('LS_nonce_l'),
            op('global_load_dword v%d, v%d, s[%d:%d] sc1' % (V_NONCE, V_PA, P_DBG, P_DBG + 1)),
            op('s_waitcnt vmcnt(0)'), op('v_cmp_eq_u32 vcc, 0, v%d' % V_NONCE),
            op('s_cbranch_vccz LB_nonce'), op('s_sleep 1'),
            op('s_sub_u32 s%d, s%d, 1' % (S_CNT, S_CNT)), op('s_cbranch_scc0 LS_nonce_l'), op('s_branch LB_nonce')]
    _spins.append(('nonce', spin))
    return [wait(vm='nonce'), op('v_cmp_eq_u32 vcc, 0, v%d' % V_NONCE), op('s_cbranch_vccnz LS_nonce'),
            label('LB_nonce'), op('s_nop 1'), op('v_readfirstlane_b32 s%d, v%d' % (S_NONCE, V_NONCE)), op('s_nop 1')]


def fp_flag():
    return [op('s_lshl_b32 s%d, s%d, 2' % (S_TMP, S_HEAD)), op('s_add_u32 s%d, s%d, s%d' % (S_TMP, S_TMP, S_W)),
            op('s_lshl_b32 s%d, s%d, 5' % (S_TMP, S_TMP)), op('s_add_u32 s%d, s%d, s%d' % (S_TMP, S_TMP, S_RB)),
            op('s_lshl_b32 s%d, s%d, 2' % (S_TMP, S_TMP)), op('s_add_u32 s%d, s%d, 0x%x' % (S_TMP, S_TMP, FP_OFF)),
            wait(vm='kvst')] + flag_store(S_TMP)


def kvred_1(sfx):
    c = [op('s_lshl_b32 s%d, s%d, 2' % (S_KR, S_HEAD)), op('s_lshr_b32 s%d, s%d, 2' % (S_TMP, S_RB)),
         op('s_add_u32 s%d, s%d, s%d' % (S_KR, S_KR, S_TMP)), op('s_lshl_b32 s%d, s%d, 7' % (S_KR, S_KR)),
         op('s_add_u32 s%d, s%d, 0x%x' % (S_KR, S_KR, FP_OFF)),
         op('v_and_b32 v%d, 15, v0' % V_PA), op('v_lshlrev_b32 v%d, 2, v%d' % (V_PA, V_PA))]
    c += poll_issue('pfp', S_KR)
    return c


def kvred_2(sfx):
    c = poll_check('pfp', 'fp' + sfx, S_KR)
    T = V_T + 4
    c += [op('v_lshrrev_b32 v%d, 2, v0' % T), op('v_lshlrev_b32 v%d, 12, v%d' % (T, T)),
          op('v_and_b32 v%d, 3, v0' % (T + 1)), op('v_lshl_add_u32 v%d, v%d, 4, v%d' % (T, T + 1, T)),
          op('s_lshl_b32 s%d, s%d, 16' % (S_KR, S_HEAD)), op('s_lshl_b32 s%d, s%d, 8' % (S_TMP, S_RB)),
          op('s_add_u32 s%d, s%d, s%d' % (S_KR, S_KR, S_TMP)), op('s_lshl_b32 s%d, s%d, 6' % (S_TMP, S_W)),
          op('s_add_u32 s%d, s%d, s%d' % (S_KR, S_KR, S_TMP)), op('s_add_u32 s%d, s%d, 0x%x' % (S_KR, S_KR, KVP_OFF)),
          vm('buffer_load_dwordx4 %s, v%d, s[%d:%d], s%d offen sc1' % (v(V_RED, 4), T, SWS, SWS + 3, S_KR), 'red')]
    return c


def kvred_3():
    R = V_RED
    T = V_T + 4
    c = [wait(vm='red')]
    for rot in (8, 4):
        for r in range(4):
            c += [op('v_add_f32_dpp v%d, v%d, v%d row_ror:%d row_mask:0xf bank_mask:0xf' % (R + r, R + r, R + r, rot))]
    for mn in ('v_permlane16_swap_b32', 'v_permlane32_swap_b32'):
        for r in range(4):
            c += [op('v_mov_b32 v%d, v%d' % (T + r, R + r))]
        for r in range(4):
            c += [op('%s v%d, v%d' % (mn, R + r, T + r))]
        for r in range(4):
            c += [op('v_add_f32 v%d, v%d, v%d' % (R + r, R + r, T + r))]
    c += [op('v_cvt_pk_bf16_f32 v%d, v%d, v%d' % (R, R, R + 1)), op('v_cvt_pk_bf16_f32 v%d, v%d, v%d' % (R + 1, R + 2, R + 3)),
          op('s_cmp_ge_u32 s%d, 14' % S_RB), op('s_cselect_b32 s%d, 0, -1' % S_TMP),
          op('v_and_b32 v%d, s%d, v%d' % (R, S_TMP, R)), op('v_and_b32 v%d, s%d, v%d' % (R + 1, S_TMP, R + 1)),
          op('v_and_b32 v%d, 3, v0' % T), op('v_lshlrev_b32 v%d, 4, v%d' % (T, T)),
          op('s_lshl_b32 s%d, s%d, 11' % (S_KR, S_HEAD)),
          op('s_lshr_b32 s%d, s%d, 3' % (S_TMP, S_RB)), op('s_lshl_b32 s%d, s%d, 10' % (S_TMP, S_TMP)),
          op('s_add_u32 s%d, s%d, s%d' % (S_KR, S_KR, S_TMP)),
          op('s_and_b32 s%d, s%d, 3' % (S_TMP, S_RB)), op('s_lshl_b32 s%d, s%d, 8' % (S_TMP, S_TMP)),
          op('s_add_u32 s%d, s%d, s%d' % (S_KR, S_KR, S_TMP)),
          op('s_lshl_b32 s%d, s%d, 6' % (S_TMP, S_W)), op('s_add_u32 s%d, s%d, s%d' % (S_KR, S_KR, S_TMP)),
          op('s_bfe_u32 s%d, s%d, 0x10002' % (S_TMP, S_RB)), op('s_lshl_b32 s%d, s%d, 3' % (S_TMP, S_TMP)),
          op('s_add_u32 s%d, s%d, s%d' % (S_KR, S_KR, S_TMP)), op('s_add_u32 s%d, s%d, 0x%x' % (S_KR, S_KR, KVF_OFF)),
          vm('buffer_store_dwordx2 %s, v%d, s[%d:%d], s%d offen sc1' % (v(R, 2), T, SWS, SWS + 3, S_KR), 'kvf')]
    return c


def fr_flag():
    return [op('s_lshl_b32 s%d, s%d, 4' % (S_TMP, S_HEAD)), op('s_add_u32 s%d, s%d, s%d' % (S_TMP, S_TMP, S_RB)),
            op('s_lshl_b32 s%d, s%d, 2' % (S_TMP, S_TMP)), op('s_add_u32 s%d, s%d, s%d' % (S_TMP, S_TMP, S_W)),
            op('s_lshl_b32 s%d, s%d, 2' % (S_TMP, S_TMP)), op('s_add_u32 s%d, s%d, 0x%x' % (S_TMP, S_TMP, FR_OFF)),
            wait(vm='kvf')] + flag_store(S_TMP)


def fh_flag(st, tag):
    return [op('s_lshl_b32 s%d, s%d, 1' % (S_TMP, S_T)), op('s_add_u32 s%d, s%d, s%d' % (S_TMP, S_TMP, S_XH)),
            op('s_lshl_b32 s%d, s%d, 5' % (S_TMP, S_TMP)), op('s_add_u32 s%d, s%d, s%d' % (S_TMP, S_TMP, S_C8)),
            op('s_lshl_b32 s%d, s%d, 2' % (S_TMP, S_TMP)), op('s_add_u32 s%d, s%d, 0x%x' % (S_TMP, S_TMP, FH_OFF + 32 * st)),
            wait(vm=tag)] + flag_store(S_TMP)


def gu_epilogue(st):
    acc = V_ACC[st]
    T = V_T
    c = [op('s_mul_i32 s%d, s%d, 114688' % (S_HO, S_T)),
         op('s_mul_i32 s%d, s%d, 57344' % (S_TMP, S_XH)), op('s_add_u32 s%d, s%d, s%d' % (S_HO, S_HO, S_TMP)),
         op('s_lshl_b32 s%d, s%d, 12' % (S_TMP, S_C8)), op('s_add_u32 s%d, s%d, s%d' % (S_HO, S_HO, S_TMP)),
         op('s_add_u32 s%d, s%d, %d' % (S_HO, S_HO, H_OFF + st * 28672))]
    for j in range(4):
        b = acc + 16 * j
        P = T + 8
        for r in range(0, 8, 2):
            g0, g1, u0, u1 = b + r, b + r + 1, b + 8 + r, b + 9 + r
            c += [op('v_mul_f32 v%d, v%d, v%d' % (T, g0, V_C1)), op('v_mul_f32 v%d, v%d, v%d' % (T + 1, g1, V_C1)),
                  op('v_exp_f32 v%d, v%d' % (T, T)), op('v_exp_f32 v%d, v%d' % (T + 1, T + 1)),
                  op('v_mul_f32 v%d, v%d, v%d' % (T + 2, g0, u0)), op('v_mul_f32 v%d, v%d, v%d' % (T + 3, g1, u1)),
                  op('v_fma_f32 v%d, v%d, v%d, v%d' % (T, T, V_VV, V_VV)),
                  op('v_fma_f32 v%d, v%d, v%d, v%d' % (T + 1, T + 1, V_VV, V_VV)),
                  op('v_rcp_f32 v%d, v%d' % (T, T)), op('v_rcp_f32 v%d, v%d' % (T + 1, T + 1)),
                  op('s_nop 0') if False else op('v_mul_f32 v%d, v%d, v%d' % (T + 2, T + 2, T)),
                  op('v_mul_f32 v%d, v%d, v%d' % (T + 3, T + 3, T + 1)),
                  op('v_cvt_pk_bf16_f32 v%d, v%d, v%d' % (P + (j & 1) * 4 + r // 2, T + 2, T + 3))]
        c += [vm('buffer_store_dwordx4 %s, v%d, s[%d:%d], s%d offen offset:%d sc1' % (
            v(P + (j & 1) * 4, 4), V_L16, SWS, SWS + 3, S_HO, 1024 * j), ('hst', st))]
    return c


def q_epilogue(st):
    acc = V_ACC[st]
    T = V_T
    c = [op('s_lshl_b32 s%d, s%d, 15' % (S_HO, S_T)),
         op('s_lshl_b32 s%d, s%d, 14' % (S_TMP, S_XH)), op('s_add_u32 s%d, s%d, s%d' % (S_HO, S_HO, S_TMP)),
         op('s_add_u32 s%d, s%d, 0x%x' % (S_HO, S_HO, PQ_OFF + st * 8192))]
    for j in range(4):
        b = acc + 16 * j
        P = T + 8
        for r in range(0, 16, 2):
            x0, x1 = b + r, b + r + 1
            c += [op('v_mul_f32 v%d, v%d, v%d' % (T, x0, V_RS2)), op('v_mul_f32 v%d, v%d, v%d' % (T + 1, x1, V_RS2)),
                  op('v_min_f32 v%d, 0, v%d' % (T, T)), op('v_min_f32 v%d, 0, v%d' % (T + 1, T + 1)),
                  op('v_exp_f32 v%d, v%d' % (T, T)), op('v_exp_f32 v%d, v%d' % (T + 1, T + 1)),
                  op('v_fmaak_f32 v%d, v%d, v%d, 0x%x' % (x0, x0, V_RS, EPS6)),
                  op('v_fmaak_f32 v%d, v%d, v%d, 0x%x' % (x1, x1, V_RS, EPS6)),
                  op('v_max_f32 v%d, 0x%x, v%d' % (x0, EPS6, x0)), op('v_max_f32 v%d, 0x%x, v%d' % (x1, EPS6, x1)),
                  op('v_add_f32 v%d, v%d, v%d' % (x0, x0, T)), op('v_add_f32 v%d, v%d, v%d' % (x1, x1, T + 1)),
                  op('v_cvt_pk_bf16_f32 v%d, v%d, v%d' % (P + r // 2, x0, x1))]
        c += [op('v_and_b32 v%d, v%d, v%d' % (P + 6, V_MLO, P + 6)), op('v_and_b32 v%d, v%d, v%d' % (P + 7, V_MLO, P + 7))]
        if j == 2:
            c += [op('s_add_u32 s%d, s%d, 4096' % (S_HO, S_HO))]
        o = (j & 1) * 2048
        c += [vm('buffer_store_dwordx4 %s, v%d, s[%d:%d], s%d offen offset:%d sc1' % (v(P, 4), V_L16, SWS, SWS + 3, S_HO, o), ('hst', st)),
              vm('buffer_store_dwordx4 %s, v%d, s[%d:%d], s%d offen offset:%d sc1' % (v(P + 4, 4), V_L16, SWS, SWS + 3, S_HO, o + 1024), ('hst', st))]
    return c


def count_ops(lst):
    return sum(1 for x in lst if x.kind not in ('wait', 'label'))


def take(side, n):
    out = []
    while side and n > 0:
        x = side.pop(0)
        out.append(x)
        if x.kind not in ('wait', 'label'):
            n -= 1
    while side and side[0].kind == 'label':
        out.append(side.pop(0))
    return out


def st_loop(st, plan, with_b_dma, next_reads):
    acc = V_ACC[st]
    c = []
    side = []
    for ks in range(28):
        gk = 28 * st + ks
        par = gk & 1
        cur, nxt = A_FR[par], A_FR[par ^ 1]
        side += plan.get(ks, [])
        if (gk & 3) == 3:
            g = (gk + 1) >> 2
            if g < NCH_A or with_b_dma:
                c += plan.get('pre_bar', {}).get(ks, [])
                c += [wait(vm=('st', g)), op('s_barrier')]
        g_now = gk >> 2
        d = []
        if g_now + 7 < NCH_A or (with_b_dma and g_now + 7 < NCH):
            d = dma(g_now + 7, gk & 3)
        rate = plan['rate'](ks)
        q = [rate // 4 + (1 if i < rate % 4 else 0) for i in range(4)]
        q = [q[0], q[3], q[1], q[2]]
        for j in range(4):
            if j in (0, 2):
                c += [wait(lg=[('stf', gk, j), ('stf', gk, j + 1)])]
            c += [mfma(v(acc + 16 * j, 16), a(cur + 4 * j, 4), a(A_XF + 4 * ks, 4), v(acc + 16 * j, 16) if ks else '0')]
            if gk + 1 < 56:
                c += rd_st(gk + 1, j, nxt + 4 * j)
            elif next_reads and j < 2:
                c += next_reads[j]
            if j == 1:
                c += d
            c += take(side, q[j])
    return c, side


def b_setup():
    T0, T1, T2, T3 = V_T + 4, V_T + 5, V_T + 6, V_T + 7
    c = [op('s_mul_i32 s%d, s%d, 37' % (S_TMP, S_IDX)), op('s_lshr_b32 s%d, s%d, 8' % (S_TMP, S_TMP)),
         op('s_mul_i32 s%d, s%d, 7' % (S_TMP2, S_TMP)), op('s_sub_u32 s%d, s%d, s%d' % (B_NB, S_IDX, S_TMP2)),
         op('s_and_b32 s%d, s2, 7' % B_T), op('s_lshl_b32 s%d, s%d, 2' % (B_T, B_T)),
         op('s_add_u32 s%d, s%d, s%d' % (B_T, B_T, S_TMP)),
         op('s_and_b32 s%d, s%d, 1' % (B_TG, S_W)), op('s_lshr_b32 s%d, s%d, 1' % (B_KH, S_W)),
         op('s_lshl_b32 s%d, s%d, 1' % (B_T, B_T)), op('s_add_u32 s%d, s%d, s%d' % (B_T, B_T, B_TG))]
    c += srd(SD, P_WD, WD_BYTES) + srd(SO, P_WO, WO_BYTES) + srd(SOUT, P_OUT, X_BYTES)
    c += [op('v_lshrrev_b32 v%d, 3, v0' % T0), op('v_mul_u32_u24 v%d, 896, v%d' % (BV_WO, T0)),
          op('v_lshrrev_b32 v%d, 1, v%d' % (T1, T0)), op('v_lshrrev_b32 v%d, 2, v0' % T2),
          op('v_xor_b32 v%d, v%d, v%d' % (T1, T1, T2)), op('v_and_b32 v%d, 1, v%d' % (T1, T1)),
          op('v_lshlrev_b32 v%d, 6, v%d' % (T1, T1)),
          op('v_and_b32 v%d, 3, v0' % T2), op('v_lshlrev_b32 v%d, 4, v%d' % (T2, T2)),
          op('v_add3_u32 v%d, v%d, v%d, v%d' % (BV_WO, BV_WO, T1, T2))]
    c += [op('s_lshl_b32 s%d, s%d, 7' % (B_WOF, B_NB)),
          op('s_mul_i32 s%d, s%d, %d' % (S_TMP, B_TG, 8 * 896)), op('s_add_u32 s%d, s%d, s%d' % (B_WOF, B_WOF, S_TMP)),
          op('s_mul_i32 s%d, s%d, %d' % (S_TMP, B_KH, 224 * 896)), op('s_add_u32 s%d, s%d, s%d' % (B_WOF2, B_WOF, S_TMP)),
          op('s_mul_i32 s%d, s%d, %d' % (S_TMP, B_KH, 896 * 896)), op('s_add_u32 s%d, s%d, s%d' % (B_WOF, B_WOF, S_TMP))]
    RP, FB, KL, C8_ = T0, T1, T2, T3
    c += [op('v_bfe_u32 v%d, v0, 2, 2' % RP), op('v_bfe_u32 v%d, v0, 4, 1' % FB),
          op('v_lshrrev_b32 v%d, 5, v0' % KL), op('v_lshl_add_u32 v%d, v%d, 2, v%d' % (KL, KL, RP)),
          op('v_and_b32 v%d, 3, v0' % C8_), op('v_lshlrev_b32 v%d, 3, v%d' % (C8_, C8_)),
          op('v_lshlrev_b32 v%d, 7, v%d' % (KL, KL)), op('v_lshl_add_u32 v%d, v%d, 5, v%d' % (KL, FB, KL)),
          op('v_add_u32 v%d, v%d, v%d' % (KL, KL, C8_)),
          op('v_lshrrev_b32 v%d, 1, v%d' % (RP, RP)), op('v_lshl_add_u32 v%d, v%d, 6, v%d' % (KL, RP, KL)),
          op('s_lshl_b32 s%d, s%d, 11' % (S_TMP, B_KH)),
          op('v_add_u32 v%d, s%d, v%d' % (BV_RA, S_TMP, KL)), op('v_xor_b32 v%d, 64, v%d' % (BV_RA + 1, BV_RA))]
    for rg in (1, 2):
        for j in range(2):
            c += [op('v_add_u32 v%d, 0x%x, v%d' % (BV_RA + 2 * rg + j, 65536 * rg, BV_RA + j))]
    c += [op('v_and_b32 v%d, 31, v0' % T0), op('v_mul_u32_u24 v%d, 896, v%d' % (BV_XO, T0)),
          op('v_lshrrev_b32 v%d, 5, v0' % T1), op('v_lshl_add_u32 v%d, v%d, 3, v%d' % (BV_XO, T1, BV_XO))]
    return c


def b_setup2():
    return [op('s_mul_i32 s%d, s%d, 114688' % (B_HO, B_T)), op('s_mul_i32 s%d, s%d, 57344' % (S_TMP, B_KH)),
            op('s_add_u32 s%d, s%d, s%d' % (B_HO, B_HO, S_TMP)),
            op('s_mul_i32 s%d, s%d, %d' % (B_XO, B_T, 32 * 896)), op('s_lshl_b32 s%d, s%d, 7' % (S_TMP, B_NB)),
            op('s_add_u32 s%d, s%d, s%d' % (B_XO, B_XO, S_TMP)), op('s_lshl_b32 s%d, s%d, 6' % (S_TMP, B_KH)),
            op('s_add_u32 s%d, s%d, s%d' % (B_XO, B_XO, S_TMP)),
            op('s_lshl_b32 s%d, s%d, 1' % (B_FH, B_T)), op('s_add_u32 s%d, s%d, s%d' % (B_FH, B_FH, B_KH)),
            op('s_lshl_b32 s%d, s%d, 7' % (B_FH, B_FH)), op('s_add_u32 s%d, s%d, 0x%x' % (B_FH, B_FH, FH_OFF))]


def pa_h():
    return [op('v_and_b32 v%d, 7, v0' % V_PA), op('v_min_u32 v%d, 6, v%d' % (V_PA, V_PA)),
            op('v_lshlrev_b32 v%d, 2, v%d' % (V_PA, V_PA))]


def phase_b():
    c = []
    T = V_T
    order = BORDER
    side = []
    extra = {}

    def rel(p, lst):
        extra.setdefault(p, []).extend(lst)

    rel(4, [op('s_lshl_b32 s%d, s%d, 11' % (B_KO, B_KH)), op('s_add_u32 s%d, s%d, 0x%x' % (B_KO, B_KO, FR_OFF)),
            op('v_mov_b32 v%d, v%d' % (V_PA, V_L16))] + poll_issue('pfr0', B_KO, 4, 0, V_POLL) + poll_issue('pfr1', B_KO, 4, 1024, V_T + 12))
    rel(10, poll_check('pfr0', 'fr0', B_KO, 4, 0, V_POLL) + poll_check('pfr1', 'fr1', B_KO, 4, 1024, V_T + 12))
    kvl = [op('s_lshl_b32 s%d, s%d, 14' % (B_KO, B_KH)), op('s_add_u32 s%d, s%d, 0x%x' % (B_KO, B_KO, KVF_OFF))]
    for i in range(16):
        if i and (i & 3) == 0:
            kvl += [op('s_add_u32 s%d, s%d, 4096' % (B_KO, B_KO))]
        kvl += [vm('buffer_load_dwordx4 %s, v%d, s[%d:%d], s%d offen offset:%d sc1' % (
            a(ba_kv(i >> 1) + 4 * (i & 1), 4), V_L16, SWS, SWS + 3, B_KO, 1024 * (i & 3)), ('kvl', i >> 3))]
    rel(11, kvl)
    rel(14, [op('v_mov_b32 v%d, 28' % V_PA)] + poll_issue('pq0', B_FH, 1, 0))

    def pql(half):
        r = [op('s_lshl_b32 s%d, s%d, 15' % (B_PO, B_T)), op('s_lshl_b32 s%d, s%d, 14' % (S_TMP, B_KH)),
             op('s_add_u32 s%d, s%d, s%d' % (B_PO, B_PO, S_TMP)),
             op('s_add_u32 s%d, s%d, 0x%x' % (B_PO, B_PO, PQ_OFF + half * 8192))]
        for i in range(8):
            if i == 4:
                r += [op('s_add_u32 s%d, s%d, 4096' % (B_PO, B_PO))]
            r += [vm('buffer_load_dwordx4 %s, v%d, s[%d:%d], s%d offen offset:%d sc1' % (
                a(BA_PQ + 32 * half + 4 * i, 4), V_L16, SWS, SWS + 3, B_PO, 1024 * (i & 3)), ('pql', half))]
        return r
    rel(20, poll_check('pq0', 'pq0', B_FH, 1, 0) + pql(0))
    rel(22, pa_h() + poll_issue('ph1', B_FH, 1, 32))
    h2 = poll_check('ph1', 'h1', B_FH, 1, 32)
    rel(46, [op('v_mov_b32 v%d, 28' % V_PA)] + poll_issue('pq1', B_FH, 1, 32))
    rel(54, poll_check('pq1', 'pq1', B_FH, 1, 32) + pql(1))
    xl = [vm('buffer_load_dwordx2 %s, v%d, s[%d:%d], s%d offen offset:%d' % (v(BV_X + 2 * q, 2), BV_XO, SX, SX + 3, B_XO, 16 * q), 'xr') for q in range(4)]
    rel(40, xl)
    rel(2, fr_flag())
    rel(8, fh_flag(1, ('hst', 1)))

    def hl(n):
        r = []
        if (n & 3) == 0:
            r += [op('s_add_u32 s%d, s%d, 0x%x' % (S_HS2, B_HO, 1024 * n))]
        r += [vm('buffer_load_dwordx4 %s, v%d, s[%d:%d], s%d offen offset:%d sc1' % (
            a(BA_H + 4 * (n % 28), 4), V_L16, SWS, SWS + 3, S_HS2, 1024 * (n & 3)), ('h', n))]
        return r

    first_f, first_s = True, True
    h2q = []
    for p in range(72):
        kind, n = order[p]
        cur, nxt = BA_FR[p & 1], BA_FR[(p + 1) & 1]
        g = NCH_A + (p >> 2)
        side += extra.get(p, [])
        if (p & 3) == 3 and p + 1 < 72:
            c += [wait(vm=('st', g + 1)), op('s_barrier')]
        if p in (28, 36, 64):
            c += stamp('b%d' % p)
        if p == 27:
            c += side
            side = []
            c += h2
            for m in range(28, 56):
                h2q.append(hl(m))
        pre = []
        if kind == 's':
            hd, half = n >> 1, n & 1
            if half == 0:
                N = BV_N
                TT = V_T
                pre += [wait(vm=[('pql', hd >> 2), ('kvl', hd >> 2)])]
                pre += [mfma(v(N, 16), a(ba_kv(hd), 4), a(BA_PQ + 8 * hd, 4), '0'),
                        mfma(v(N, 16), a(ba_kv(hd) + 4, 4), a(BA_PQ + 8 * hd + 4, 4), v(N, 16))]
                fill = []
                for _ in range(4):
                    if h2q:
                        fill += h2q.pop(0)
                pre += fill
                pre += [op('v_mov_b32 v%d, v%d' % (TT, N + 12)), op('v_mov_b32 v%d, v%d' % (TT + 1, N + 12)),
                        op('v_permlane32_swap_b32 v%d, v%d' % (TT, TT + 1)),
                        op('v_add_f32 v%d, 0x%x, v%d' % (TT + 1, EPS6, TT + 1)),
                        op('v_rcp_f32 v%d, v%d' % (TT + 1, TT + 1))]
                for r in range(16):
                    pre += [op('v_mul_f32 v%d, v%d, v%d' % (N + r, N + r, TT + 1))]
                for r in range(8):
                    pre += [op('v_cvt_pk_bf16_f32 v%d, v%d, v%d' % (TT + 4 + r if False else V_OF + r, N + 2 * r, N + 2 * r + 1))]
                pre += [op('v_and_b32 v%d, v%d, v%d' % (V_OF + 6, V_MLO, V_OF + 6)),
                        op('v_and_b32 v%d, v%d, v%d' % (V_OF + 7, V_MLO, V_OF + 7))]
            Bop = v(V_OF + 4 * half, 4)
            acc, first = BV_S, first_s
            first_s = False
        else:
            pre += [wait(vm=('h', n))]
            Bop = a(BA_H + 4 * (n % 28), 4)
            acc, first = BV_F, first_f
            first_f = False
        c += pre
        d = dma(g + 7, p & 3) if g + 7 < NCH else []
        for j in range(2):
            c += [wait(lg=('wf', p, j))]
            c += [mfma(v(acc + 16 * j, 16), a(cur + 4 * j, 4), Bop, '0' if first else v(acc + 16 * j, 16))]
            if p + 1 < 72:
                c += rd_b(p + 1, j, nxt + 4 * j)
            if j == 0:
                c += d
            c += take(side, 6)
        if kind == 's' and h2q:
            for _ in range(3 if (n & 1) else 0):
                if h2q:
                    c += h2q.pop(0)
        if p == 35:
            while h2q:
                c += h2q.pop(0)
    c += side
    c += stamp('bloop')
    c += [op('s_barrier'), op('s_nop 7'), op('s_nop 7')]
    c += [op('s_lshl_b32 s%d, s%d, 13' % (S_TMP, S_W)), op('v_add_u32 v%d, s%d, v%d' % (T, S_TMP, V_L16)),
          op('s_xor_b32 s%d, s%d, 2' % (S_TMP, S_W)), op('s_lshl_b32 s%d, s%d, 13' % (S_TMP, S_TMP)),
          op('v_add_u32 v%d, s%d, v%d' % (T + 1, S_TMP, V_L16)),
          op('s_cmp_eq_u32 s%d, 0' % B_KH), op('s_cbranch_scc1 L_k0')]
    for q in range(4):
        c += [lg('ds_write_b128 v%d, %s offset:%d' % (T, v(BV_F + 4 * q, 4), 1024 * q), 'xw'),
              lg('ds_write_b128 v%d, %s offset:%d' % (T, v(BV_S + 4 * q, 4), 4096 + 1024 * q), 'xw')]
    c += [wait(lg='xw')]
    for r in range(16):
        c += [op('v_mov_b32 v%d, v%d' % (BV_F + r, BV_F + 16 + r)), op('v_mov_b32 v%d, v%d' % (BV_S + r, BV_S + 16 + r))]
    c += [op('s_branch L_k1'), label('L_k0')]
    for q in range(4):
        c += [lg('ds_write_b128 v%d, %s offset:%d' % (T, v(BV_F + 16 + 4 * q, 4), 1024 * q), 'xw'),
              lg('ds_write_b128 v%d, %s offset:%d' % (T, v(BV_S + 16 + 4 * q, 4), 4096 + 1024 * q), 'xw')]
    c += [op('s_waitcnt lgkmcnt(0)'), label('L_k1'), op('s_waitcnt lgkmcnt(0)'), op('s_barrier')]
    for q in range(4):
        c += [lg('ds_read_b128 %s, v%d offset:%d' % (v(BV_F + 16 + 4 * q, 4), T + 1, 1024 * q), 'xr2'),
              lg('ds_read_b128 %s, v%d offset:%d' % (v(BV_S + 16 + 4 * q, 4), T + 1, 4096 + 1024 * q), 'xr2')]
    c += [wait(lg='xr2', vm='xr')]
    for r in range(16):
        c += [op('v_add_f32 v%d, v%d, v%d' % (BV_F + r, BV_F + r, BV_F + 16 + r)),
              op('v_add_f32 v%d, v%d, v%d' % (BV_S + r, BV_S + r, BV_S + 16 + r))]
    for r in range(0, 16, 2):
        f0, f1, s0, s1 = BV_F + r, BV_F + r + 1, BV_S + r, BV_S + r + 1
        xr = BV_X + r // 2
        c += [op('v_mul_f32 v%d, 0x%x, v%d' % (T, NLOG2E, f0)), op('v_mul_f32 v%d, 0x%x, v%d' % (T + 1, NLOG2E, f1)),
              op('v_exp_f32 v%d, v%d' % (T, T)), op('v_exp_f32 v%d, v%d' % (T + 1, T + 1)),
              op('v_mul_f32 v%d, v%d, v%d' % (s0, s0, f0)), op('v_mul_f32 v%d, v%d, v%d' % (s1, s1, f1)),
              op('v_add_f32 v%d, 1.0, v%d' % (T, T)), op('v_add_f32 v%d, 1.0, v%d' % (T + 1, T + 1)),
              op('v_rcp_f32 v%d, v%d' % (T, T)), op('v_rcp_f32 v%d, v%d' % (T + 1, T + 1)),
              op('v_lshlrev_b32 v%d, 16, v%d' % (T + 2, xr)), op('v_and_b32 v%d, 0xffff0000, v%d' % (T + 3, xr)),
              op('v_fma_f32 v%d, v%d, v%d, v%d' % (T + 2, s0, T, T + 2)),
              op('v_fma_f32 v%d, v%d, v%d, v%d' % (T + 3, s1, T + 1, T + 3)),
              op('v_cvt_pk_bf16_f32 v%d, v%d, v%d' % (xr, T + 2, T + 3))]
    for q in range(4):
        c += [vm('buffer_store_dwordx2 %s, v%d, s[%d:%d], s%d offen offset:%d' % (v(BV_X + 2 * q, 2), BV_XO, SOUT, SOUT + 3, B_XO, 16 * q), 'o')]
    c += stamp('end')
    return c, hl


V_OF = 96


def build():
    del _spins[:]
    del _stamps[:]
    pro = prologue()
    stats, tail = ln_stats()
    ckv = centre_kv(tail) + stamp('kvloop')

    kva, kvw = kv_epilogue_a()
    plan1 = {0: nonce_issue() + list(kva), 'rate': lambda ks: 8, 'pre_bar': {}}
    plan1[19] = list(kvw)
    plan1['pre_bar'][23] = [wait(lg='kvw')]
    plan1[23] = kv_epilogue_b()
    plan1[18] = nonce_check()
    st1, rest1 = st_loop(0, plan1, False, None)
    common = pro + stats + ckv + st1 + rest1 + stamp('st0')

    bsetup = b_setup()
    pb, hl = phase_b()
    planf = {'rate': lambda ks: 16 if ks < 14 else 8, 'pre_bar': {}}
    e0 = gu_epilogue(0)
    planf[0] = e0[:112] + fp_flag() + e0[112:]
    planf[14] = kvred_1('f')
    planf[18] = kvred_2('f')
    planf[21] = fh_flag(0, ('hst', 0))
    planf[22] = b_setup2h() + pa_h() + poll_issue('ph0', B_FH, 1, 0)
    planf[24] = kvred_3()
    nr = [rd_b(0, 0, BA_FR[0]), rd_b(0, 1, BA_FR[0] + 4)]
    st2f, restf = st_loop(1, planf, True, nr)
    fpath = bsetup + st2f + restf + stamp('st1')
    fpath += poll_check('ph0', 'h0', B_FH, 1, 0)
    epi = gu_epilogue(1)
    hq = [hl(n) for n in range(28)]
    out = []
    k = 0
    while epi or hq:
        if hq:
            out += hq.pop(0)
        out += take(epi, 8)
    fpath += out + stamp('epi1') + pb + stamp_flush() + [label('L_done'), op('s_endpgm')]

    planq = {'rate': lambda ks: 17, 'pre_bar': {}}
    q0 = q_epilogue(0)
    planq[0] = q0[:110] + fp_flag() + q0[110:220] + kvred_1('q') + q0[220:300] + kvred_2('q') + q0[300:390] + kvred_3() + q0[390:]
    st2q, restq = st_loop(1, planq, False, None)
    qpath = st2q + restq + stamp('st1')
    qe = q_epilogue(1)
    qpath += qe[:60] + fr_flag() + qe[60:120] + fh_flag(0, ('hst', 0)) + qe[120:] + fh_flag(1, ('hst', 1))
    qpath += stamp('epi1') + stamp('end') + stamp_flush() + [op('s_endpgm')]

    branch = [op('s_cmp_eq_u32 s%d, 7' % S_C8), op('s_cbranch_scc1 L_attn')]
    st = {}
    seq_f = resolve_waits(common + branch + fpath)
    seq_q = resolve_waits(common + [I('<mark>', 'raw')] + qpath)
    kq = [i for i, x in enumerate(seq_q) if x.txt == '<mark>'][0]
    seq_q = [label('L_attn'), op('s_nop 7'), op('s_nop 7')] + seq_q[kq + 1:]
    txt = render(pad_hazards(seq_f, stats=st)) + render(pad_hazards(seq_q, stats=st))
    for name, sp in _spins:
        txt += render(pad_hazards(sp))
    return txt, st


def b_setup2h():
    return b_setup2()


def descriptor(name, nv, acc, ns=102):
    return '''.section .rodata,"a"
.p2align 6
.amdhsa_kernel %s
  .amdhsa_next_free_vgpr %d
  .amdhsa_next_free_sgpr %d
  .amdhsa_accum_offset %d
  .amdhsa_group_segment_fixed_size 0
  .amdhsa_kernarg_size 80
  .amdhsa_user_sgpr_count 2
  .amdhsa_user_sgpr_kernarg_segment_ptr 1
  .amdhsa_system_sgpr_workgroup_id_x 1
  .amdhsa_float_denorm_mode_32 3
.end_amdhsa_kernel
''' % (name, nv, ns, acc)


def main(path):
    body, st = build()
    hdr = '''; linear attention + SwiGLU block, one launch
; @launch grid=(256,1,1) block=(256,1,1) lds=%d
.amdgcn_target "amdgcn-amd-amdhsa--gfx950"
.text
.globl %s
.p2align 8
.type %s,@function
%s:
''' % (LDS_BYTES, NAME, NAME, NAME)
    txt = hdr + body + descriptor(NAME, 512, 256)
    open(path, 'w').write(txt)
    print('nops', st.get('nops'), st.get('nop_states'), 'bytes', len(txt))
    if PROF:
        print('stamps', _stamps)
    if OPT.get('shownops'):
        for x in st.get('where', []):
            print(x)


if __name__ == '__main__':
    args = sys.argv[1:]
    path = args[0]
    for x in args[1:]:
        if x == 'prof':
            PROF = True
        elif '=' in x:
            k, val = x.split('=')
            OPT[k] = int(val)
    main(path)
```

```python
import sys
from asmlib import *

NAME = 'recurrent_scan__linear_attn_block__swiglu_ffn__prompt_kernel'

H_OFF = 0
PQ_OFF = 0x700000
KVP_OFF = 0x900000
KVF_OFF = 0xA00000
FP_OFF = 0xA10000
FR_OFF = 0xA12000
FH_OFF = 0xA14000
EPOCH_OFF = 0xA20000
PROF_OFF = 0xB00000
WS_SIZE = 0xC00000

X_BYTES = 2048 * 896
QKV_BYTES = 448 * 2688
WO_BYTES = 448 * 896
WG_BYTES = 448 * 3584
WD_BYTES = 1792 * 896

LOG2E = 0x3fb8aa3b
NLOG2E = 0xbfb8aa3b
EPS6 = 0x358637bd
EPS5 = 0x3727c5ac
INV448 = 0x3b124925
LDS_BYTES = 163840
SPIN_LIMIT = 0x40000

PROF = False
OPT = {}
_stamps = []


def v(a, n=1):
    return 'v%d' % a if n == 1 else 'v[%d:%d]' % (a, a + n - 1)


def a(x, n=1):
    return 'a%d' % x if n == 1 else 'a[%d:%d]' % (x, x + n - 1)


def srd(dst, plo, nbytes):
    return [op('s_mov_b32 s%d, s%d' % (dst, plo)), op('s_mov_b32 s%d, s%d' % (dst + 1, plo + 1)),
            op('s_mov_b32 s%d, 0x%x' % (dst + 2, nbytes)), op('s_mov_b32 s%d, 0x20000' % (dst + 3))]


def mfma(d, A, B, c):
    return op('v_mfma_f32_32x32x16_bf16 %s, %s, %s, %s' % (d, A, B, c))


PROF_SET = None


def stamp(name):
    if not PROF:
        return []
    if PROF_SET is not None and name not in PROF_SET:
        return []
    if name in _stamps:
        i = _stamps.index(name)
    else:
        i = len(_stamps)
        _stamps.append(name)
    mn = 's_memtime' if (name.startswith('cyc') or OPT.get('cyc')) else 's_memrealtime'
    return [op('%s s[%d:%d]' % (mn, S_PROF + 2 * i, S_PROF + 2 * i + 1))]


def stamp_flush():
    if not PROF:
        return []
    n = len(_stamps)
    assert S_PROF + 2 * n <= 102
    c = [op('s_waitcnt lgkmcnt(0)')]
    c += [op('s_lshl_b32 s%d, s2, 2' % S_TMP), op('s_add_u32 s%d, s%d, s%d' % (S_TMP, S_TMP, S_W)),
          op('s_lshl_b32 s%d, s%d, 8' % (S_TMP, S_TMP)), op('s_add_u32 s%d, s%d, 0x%x' % (S_TMP, S_TMP, PROF_OFF))]
    for i in range(n):
        c += [op('v_mov_b32 v4, s%d' % (S_PROF + 2 * i)), op('v_mov_b32 v5, s%d' % (S_PROF + 2 * i + 1)),
              vm('buffer_store_dwordx2 v[4:5], off, s[%d:%d], s%d offset:%d' % (SWS, SWS + 3, S_TMP, 8 * i), 'prof'),
              op('s_nop 1')]
    return c


P_X, P_QKV, P_WO, P_WG, P_WU, P_WD, P_OUT, P_DBG, P_WS = 4, 6, 8, 12, 14, 16, 18, 20, 22
SX, SQ, SW, SWS, SD, SO, SOUT = 24, 28, 32, 36, 40, 44, 48
S_W, S_RB, S_XH, S_C8, S_HEAD, S_T = 52, 53, 54, 55, 56, 57
S_XO, S_KVO, S_STO, S_STK, S_STO1 = 58, 59, 60, 61, 62
S_M0W, S_TMP, S_TMP2, S_HO, S_NONCE, S_CNT = 63, 64, 65, 66, 67, 68
S_IDX = 69
B_TG, B_KH, B_NB, B_T, B_WOF, B_WOF2, B_HO, B_XO, B_PO, B_KO, B_FH = 3, 10, 11, 4, 58, 59, 61, 62, 60, 5, 69
S_HS2, S_KR, S_CMP = 6, 7, 12
S_PROF = 70
V_L16 = 1
V_XO = 2
V_XR = 6
V_KVO, V_WO = 10, 11
V_RA = 12
V_KVR = 24
V_C1, V_VV, V_RS, V_RS2, V_MLO, V_CV = 26, 27, 28, 29, 30, 31
V_T = 32
V_CM = 48
V_RST = 48
V_AV = 64
V_D0, V_D1 = 80, 96
V_RS2T = 80
V_KVD = 96
V_A1, V_A2 = 112, 116
V_NONCE, V_PA, V_POLL = 120, 121, 124
V_RED = 112
V_AK = 128
V_ACC = [192, 128]
V_RAW = 144
A_XF = 0
A_FR = [112, 128]
XB = 49152
TAB = 57344
KVRED = 49152
RING = [4, 5, 6, 7, 8, 9, 0, 1, 2]
NCH_A = 14
NCH = 32
BV_WO = 24
BV_RA = 6
BV_XO = 25
BV_F, BV_S, BV_N = 128, 160, 80
BV_X = 48
BA_H = 144
BA_FR = [112, 120]
BA_PQ = 0


def ba_kv(hd):
    return 64 + 8 * hd if hd < 6 else 128 + 8 * (hd - 6)


def slot_addr(g):
    return 16384 * RING[g % 9]


_spins = []


def poll_issue(tag, soff_reg, nregs=1, off=0, dst=None):
    dst = V_POLL if dst is None else dst
    mn = {1: 'buffer_load_dword', 4: 'buffer_load_dwordx4'}[nregs]
    return [vm('%s %s, v%d, s[%d:%d], s%d offen offset:%d sc1' % (mn, v(dst, nregs), V_PA, SWS, SWS + 3, soff_reg, off), tag)]


def poll_check(tag, name, soff_reg, nregs=1, off=0, dst=None):
    dst = V_POLL if dst is None else dst

    def cmp():
        r = [op('v_cmp_ne_u32 vcc, s%d, v%d' % (S_NONCE, dst))]
        for i in range(1, nregs):
            r += [op('v_cmp_ne_u32 s[%d:%d], s%d, v%d' % (S_CMP, S_CMP + 1, S_NONCE, dst + i)),
                  op('s_or_b64 vcc, vcc, s[%d:%d]' % (S_CMP, S_CMP + 1))]
        return r
    mn = {1: 'buffer_load_dword', 4: 'buffer_load_dwordx4'}[nregs]
    spin = [label('LS_%s' % name), op('s_nop 4'), op('s_mov_b32 s%d, 0x%x' % (S_CNT, SPIN_LIMIT)), label('LS_%s_l' % name),
            op('%s %s, v%d, s[%d:%d], s%d offen offset:%d sc1' % (mn, v(dst, nregs), V_PA, SWS, SWS + 3, soff_reg, off)),
            op('s_waitcnt vmcnt(0)')] + cmp() + [
            op('s_cbranch_vccz LB_%s' % name), op('s_sleep 1'),
            op('s_sub_u32 s%d, s%d, 1' % (S_CNT, S_CNT)), op('s_cbranch_scc0 LS_%s_l' % name), op('s_branch LB_%s' % name)]
    _spins.append((name, spin))
    return [wait(vm=tag)] + cmp() + [op('s_cbranch_vccnz LS_%s' % name), label('LB_%s' % name), op('s_nop 4')]


def flag_store(soff_reg, off=0):
    return [vm('buffer_store_dword v%d, off, s[%d:%d], s%d offset:%d sc1' % (V_NONCE, SWS, SWS + 3, soff_reg, off), 'flag')]


def brow(n):
    return 128 * ((n % 28) // 4) + 64 * (n // 28) + 16 * (n % 4)


BORDER = [('f', n) for n in range(28)] + [('s', m) for m in range(8)] + [('f', n) for n in range(28, 56)] + [('s', m) for m in range(8, 16)]


def dma(g, ks):
    r = [op('s_add_u32 m0, s%d, 0x%x' % (S_M0W, slot_addr(g) + ks * 4096))]
    if g < NCH_A:
        if g * 4 + ks == 28:
            r.append(op('s_mov_b32 s%d, s%d' % (S_STO, S_STO1)))
        else:
            r.append(op('s_add_u32 s%d, s%d, s%d' % (S_STO, S_STO, S_STK)))
        r.append(vm('buffer_load_dwordx4 v%d, s[%d:%d], s%d offen lds' % (V_WO, SW, SW + 3, S_STO), ('st', g)))
        return r
    p = (g - NCH_A) * 4 + ks
    kind, n = BORDER[p]
    if kind == 'f':
        r.append(op('s_add_u32 s%d, s%d, 0x%x' % (S_TMP2, B_WOF, brow(n) * 896)))
        r.append(vm('buffer_load_dwordx4 v%d, s[%d:%d], s%d offen lds' % (BV_WO, SD, SD + 3, S_TMP2), ('st', g)))
    else:
        r.append(op('s_add_u32 s%d, s%d, 0x%x' % (S_TMP2, B_WOF2, (28 * (n >> 1) + 16 * (n & 1)) * 896)))
        r.append(vm('buffer_load_dwordx4 v%d, s[%d:%d], s%d offen lds' % (BV_WO, SO, SO + 3, S_TMP2), ('st', g)))
    return r


def dma_kv(m):
    return [op('s_add_u32 m0, s%d, 0x%x' % (S_M0W, 4096 * m)),
            op('s_add_u32 s%d, s%d, 0x%x' % (S_KVO, S_KVO, 32 * 2688)),
            vm('buffer_load_dwordx4 v%d, s[%d:%d], s%d offen lds' % (V_KVO, SQ, SQ + 3, S_KVO), ('kv', m))]


def rd_kv(ks, t, dst):
    base = 4096 * (ks >> 1) + (ks & 1) * 2048
    return [lg('ds_read_b64_tr_b16 %s, v%d offset:%d' % (a(dst, 2), V_KVR + t, base), ('kvf', ks, t)),
            lg('ds_read_b64_tr_b16 %s, v%d offset:%d' % (a(dst + 2, 2), V_KVR + t, base + 1024), ('kvf', ks, t))]


def rd_st(gk, j, dst):
    addr = slot_addr(gk >> 2) + (gk & 3) * 4096
    reg = V_RA + 4 * (addr >> 16) + j
    off = addr & 0xffff
    return [lg('ds_read_b64_tr_b16 %s, v%d offset:%d' % (a(dst, 2), reg, off), ('stf', gk, j)),
            lg('ds_read_b64_tr_b16 %s, v%d offset:%d' % (a(dst + 2, 2), reg, off + 2048), ('stf', gk, j))]


def rd_b(p, j, dst):
    addr = slot_addr(NCH_A + (p >> 2)) + (p & 3) * 4096
    reg = BV_RA + 2 * (addr >> 16) + j
    off = addr & 0xffff
    return [lg('ds_read_b64_tr_b16 %s, v%d offset:%d' % (a(dst, 2), reg, off), ('wf', p, j)),
            lg('ds_read_b64_tr_b16 %s, v%d offset:%d' % (a(dst + 2, 2), reg, off + 1024), ('wf', p, j))]


def lane_fields():
    KL, FB, C8_, RP = V_T + 4, V_T + 5, V_T + 6, V_T + 7
    return [op('v_bfe_u32 v%d, v0, 2, 2' % RP), op('v_bfe_u32 v%d, v0, 4, 1' % FB),
            op('v_lshrrev_b32 v%d, 5, v0' % KL), op('v_lshl_add_u32 v%d, v%d, 2, v%d' % (KL, KL, RP)),
            op('v_and_b32 v%d, 3, v0' % C8_), op('v_lshlrev_b32 v%d, 3, v%d' % (C8_, C8_))]


def prologue():
    c = [op('s_cmp_ge_u32 s2, 256'), op('s_cbranch_scc1 L_done')]
    c += stamp('entry') + stamp('cyc0')
    c += [op('s_load_dwordx4 s[4:7], s[0:1], 0'), op('s_load_dwordx4 s[20:23], s[0:1], 64'),
          op('s_load_dwordx4 s[12:15], s[0:1], 32'), op('s_load_dwordx4 s[16:19], s[0:1], 48'),
          op('s_load_dwordx2 s[8:9], s[0:1], 16')]
    c += [op('v_lshrrev_b32 v1, 6, v0'), op('v_and_b32 v0, 63, v0'), op('v_readfirstlane_b32 s%d, v1' % S_W)]
    T0, T1, T2 = V_T, V_T + 1, V_T + 2
    c += [op('v_lshrrev_b32 v%d, 3, v0' % T0), op('v_and_b32 v%d, 7, v0' % T1),
          op('v_xor_b32 v%d, v%d, v%d' % (T1, T1, T0)), op('v_lshlrev_b32 v%d, 4, v%d' % (T1, T1)),
          op('v_mul_u32_u24 v%d, 896, v%d' % (T2, T0)),
          op('v_add_u32 v%d, v%d, v%d' % (V_XO, T2, T1)), op('v_add_u32 v%d, 6144, v%d' % (V_XO + 1, V_XO)),
          op('v_xor_b32 v%d, 16, v%d' % (T1, T1)), op('v_add_u32 v%d, v%d, v%d' % (V_XO + 2, T2, T1)),
          op('v_add_u32 v%d, 12288, v%d' % (V_XO + 2, V_XO + 2)), op('v_add_u32 v%d, 6144, v%d' % (V_XO + 3, V_XO + 2))]
    c += [op('s_and_b32 s%d, s2, 3' % S_RB), op('s_lshl_b32 s%d, s%d, 2' % (S_RB, S_RB)),
          op('s_lshr_b32 s%d, s2, 3' % S_IDX), op('s_and_b32 s%d, s%d, 3' % (S_TMP, S_IDX)),
          op('s_add_u32 s%d, s%d, s%d' % (S_RB, S_RB, S_TMP)),
          op('s_lshl_b32 s%d, s%d, 2' % (S_T, S_RB)), op('s_add_u32 s%d, s%d, s%d' % (S_T, S_T, S_W)),
          op('s_mul_i32 s%d, s%d, %d' % (S_XO, S_T, 32 * 896)),
          op('s_mul_i32 s%d, s%d, 28672' % (S_TMP2, S_W)), op('s_add_u32 s%d, s%d, %d' % (S_TMP2, S_TMP2, XB))]
    c += [op('s_lshl_b32 s%d, s2, 2' % S_CNT), op('s_add_u32 s%d, s%d, s%d' % (S_CNT, S_CNT, S_W))]
    c += [op('s_waitcnt lgkmcnt(0)')]
    c += [op('v_mov_b32 v%d, 0x%x' % (V_PA, EPOCH_OFF)), op('v_mov_b32 v%d, 0' % V_NONCE),
          op('s_cmp_lg_u32 s%d, 0' % S_CNT), op('s_cbranch_scc1 L_notag1'),
          op('global_load_dword v%d, v%d, s[%d:%d] sc1' % (V_NONCE, V_PA, P_WS, P_WS + 1)),
          label('L_notag1')]
    c += srd(SX, P_X, X_BYTES)
    for i in range(7):
        c += [op('s_add_u32 m0, s%d, %d' % (S_TMP2, 4096 * i))]
        for q in range(4):
            c += [vm('buffer_load_dwordx4 v%d, s[%d:%d], s%d offen offset:%d lds' % (V_XO + q, SX, SX + 3, S_XO, 1024 * q), ('x', i))]
        if i < 6:
            c += [op('s_add_u32 s%d, s%d, 128' % (S_XO, S_XO))]
    c += stamp('xiss')
    c += [op('s_bfe_u32 s%d, s2, 0x10002' % S_XH), op('s_lshr_b32 s%d, s%d, 2' % (S_C8, S_IDX)),
          op('s_lshl_b32 s%d, s%d, 3' % (S_HEAD, S_XH)), op('s_add_u32 s%d, s%d, s%d' % (S_HEAD, S_HEAD, S_C8)),
          op('s_lshl_b32 s%d, s%d, 10' % (S_M0W, S_W))]
    c += srd(SQ, P_QKV, QKV_BYTES) + srd(SWS, P_WS, WS_SIZE)
    c += [op('v_lshrrev_b32 v%d, 3, v0' % T0), op('v_mul_u32_u24 v%d, 2688, v%d' % (V_KVO, T0)),
          op('v_lshrrev_b32 v%d, 1, v%d' % (T1, T0)), op('v_lshrrev_b32 v%d, 2, v0' % T2),
          op('v_xor_b32 v%d, v%d, v%d' % (T1, T1, T2)), op('v_and_b32 v%d, 1, v%d' % (T1, T1)),
          op('v_mul_u32_u24 v%d, 896, v%d' % (T1, T1)),
          op('v_and_b32 v%d, 3, v0' % T2), op('v_lshlrev_b32 v%d, 4, v%d' % (T2, T2)),
          op('v_add3_u32 v%d, v%d, v%d, v%d' % (V_KVO, V_KVO, T1, T2)), op('v_add_u32 v%d, 896, v%d' % (V_KVO, V_KVO))]
    c += [op('s_mul_i32 s%d, s%d, 56' % (S_KVO, S_HEAD)), op('s_mul_i32 s%d, s%d, %d' % (S_TMP, S_W, 8 * 2688)),
          op('s_add_u32 s%d, s%d, s%d' % (S_KVO, S_KVO, S_TMP)),
          op('s_sub_u32 s%d, s%d, 0x%x' % (S_KVO, S_KVO, 32 * 2688))]
    nkv0 = OPT.get('kv_early', 4)
    for m in range(nkv0):
        c += dma_kv(m)
    F_, KL, FB, C8_, RP = V_T + 3, V_T + 4, V_T + 5, V_T + 6, V_T + 7
    c += [op('v_and_b32 v%d, 31, v0' % T0), op('v_lshrrev_b32 v%d, 5, v0' % T1), op('v_and_b32 v%d, 7, v%d' % (T2, T0)),
          op('v_lshrrev_b32 v%d, 4, v%d' % (F_, T0)), op('v_xor_b32 v%d, v%d, v%d' % (F_, F_, T2)),
          op('v_xor_b32 v%d, v%d, v%d' % (F_, F_, T1)), op('v_lshlrev_b32 v%d, 4, v%d' % (F_, F_)),
          op('v_lshl_add_u32 v%d, v%d, 7, v%d' % (F_, T2, F_)), op('v_lshrrev_b32 v%d, 3, v%d' % (T2, T0)),
          op('v_lshl_add_u32 v%d, v%d, 10, v%d' % (F_, T2, F_)), op('v_add_u32 v%d, s%d, v%d' % (V_XR, S_TMP2, F_))]
    for q in range(1, 4):
        c += [op('v_xor_b32 v%d, %d, v%d' % (V_XR + q, 32 * q, V_XR))]
    c += [op('v_lshlrev_b32 v%d, 3, v%d' % (T1, T1)), op('v_sub_u32 v%d, v%d, v%d' % (T0, T0, T1)),
          op('v_and_b32 v%d, 1, v%d' % (T1, T0)), op('v_lshlrev_b32 v%d, 4, v%d' % (T1, T1)),
          op('v_mov_b32 v%d, 0x3f80' % T2), op('v_lshlrev_b32 v%d, v%d, v%d' % (T2, T1, T2)),
          op('v_ashrrev_i32 v%d, 1, v%d' % (T0, T0))]
    for m in range(4):
        c += [op('v_cmp_eq_u32 vcc, %d, v%d' % (m, T0)), op('v_cndmask_b32 v%d, 0, v%d, vcc' % (V_A1 + m, T2)),
              op('v_cmp_eq_u32 vcc, %d, v%d' % (m + 8, T0)), op('v_cndmask_b32 v%d, 0, v%d, vcc' % (V_A2 + m, T2))]
    c += [op('v_lshlrev_b32 v%d, 4, v0' % V_L16), op('v_cmp_gt_u32 vcc, 32, v0'),
          op('v_cndmask_b32 v%d, 0, -1, vcc' % V_MLO), op('v_and_b32 v%d, 31, v0' % T0),
          op('v_cmp_eq_u32 vcc, 28, v%d' % T0), op('v_mov_b32 v%d, 0x3f803f80' % T1),
          op('v_cndmask_b32 v%d, 0, v%d, vcc' % (V_CV, T1))]
    c += [op('s_cmp_eq_u32 s%d, 7' % S_C8), op('s_cbranch_scc1 L_parq')]
    c += [op('s_and_b32 s%d, s%d, 1' % (S_TMP, S_W)), op('s_cmp_eq_u32 s%d, 0' % S_TMP),
          op('s_cselect_b32 s%d, s%d, s%d' % (SW, P_WG, P_WU)), op('s_cselect_b32 s%d, s%d, s%d' % (SW + 1, P_WG + 1, P_WU + 1)),
          op('s_mov_b32 s%d, 0x%x' % (SW + 2, WG_BYTES)), op('s_mov_b32 s%d, 0x20000' % (SW + 3))]
    c += [op('v_lshrrev_b32 v%d, 3, v0' % T0), op('v_mul_u32_u24 v%d, 3584, v%d' % (V_WO, T0)),
          op('v_lshrrev_b32 v%d, 1, v%d' % (T1, T0)), op('v_and_b32 v%d, 1, v%d' % (T1, T1)),
          op('s_lshl_b32 s%d, s%d, 1' % (S_TMP, S_TMP)), op('v_or_b32 v%d, s%d, v%d' % (T1, S_TMP, T1)),
          op('v_and_b32 v%d, 7, v0' % T2), op('v_lshrrev_b32 v%d, 1, v%d' % (T2, T2)),
          op('v_xor_b32 v%d, v%d, v%d' % (T1, T1, T2)), op('v_lshlrev_b32 v%d, 5, v%d' % (T1, T1)),
          op('v_and_b32 v%d, 1, v0' % T2), op('v_lshlrev_b32 v%d, 4, v%d' % (T2, T2)),
          op('v_add3_u32 v%d, v%d, v%d, v%d' % (V_WO, V_WO, T1, T2))]
    c += [op('s_mul_i32 s%d, s%d, 7' % (S_STO, S_XH)), op('s_add_u32 s%d, s%d, s%d' % (S_STO, S_STO, S_C8)),
          op('s_lshl_b32 s%d, s%d, 8' % (S_STO, S_STO)),
          op('s_lshr_b32 s%d, s%d, 1' % (S_TMP, S_W)), op('s_mul_i32 s%d, s%d, %d' % (S_TMP, S_TMP, 8 * 3584)),
          op('s_add_u32 s%d, s%d, s%d' % (S_STO, S_STO, S_TMP)), op('s_add_u32 s%d, s%d, 128' % (S_STO1, S_STO)),
          op('s_mov_b32 s%d, %d' % (S_STK, 16 * 3584)), op('s_sub_u32 s%d, s%d, s%d' % (S_STO, S_STO, S_STK))]
    c += lane_fields()
    c += [op('v_lshrrev_b32 v%d, 1, v%d' % (F_, RP)), op('v_lshl_or_b32 v%d, v%d, 1, v%d' % (F_, FB, F_)),
          op('v_lshlrev_b32 v%d, 10, v%d' % (T0, FB)), op('v_lshl_add_u32 v%d, v%d, 7, v%d' % (T0, KL, T0)),
          op('v_add_u32 v%d, v%d, v%d' % (T0, T0, C8_))]
    for j in range(4):
        c += [op('v_xor_b32 v%d, %d, v%d' % (T1, j, F_)), op('v_lshl_add_u32 v%d, v%d, 5, v%d' % (V_RA + j, T1, T0))]
    c += [op('s_branch L_pardone'), label('L_parq')]
    c += srd(SW, P_QKV, QKV_BYTES)
    c += [op('v_lshrrev_b32 v%d, 4, v0' % T0), op('v_mul_u32_u24 v%d, 2688, v%d' % (V_WO, T0)),
          op('v_lshlrev_b32 v%d, 2, v%d' % (T1, T0)), op('v_sub_u32 v%d, v0, v%d' % (T1, T1)),
          op('v_and_b32 v%d, 15, v%d' % (T1, T1)), op('v_lshl_add_u32 v%d, v%d, 4, v%d' % (V_WO, T1, V_WO))]
    c += [op('s_mul_i32 s%d, s%d, 448' % (S_STO, S_XH)), op('s_mul_i32 s%d, s%d, %d' % (S_TMP, S_W, 4 * 2688)),
          op('s_add_u32 s%d, s%d, s%d' % (S_STO, S_STO, S_TMP)), op('s_add_u32 s%d, s%d, 224' % (S_STO1, S_STO)),
          op('s_mov_b32 s%d, %d' % (S_STK, 16 * 2688)), op('s_sub_u32 s%d, s%d, s%d' % (S_STO, S_STO, S_STK))]
    c += lane_fields()
    c += [op('v_lshl_add_u32 v%d, v%d, 5, v%d' % (T0, FB, C8_)), op('v_lshl_add_u32 v%d, v%d, 6, v%d' % (T0, RP, T0)),
          op('v_lshlrev_b32 v%d, 8, v%d' % (T2, KL))]
    for j in range(4):
        c += [op('v_add_u32 v%d, %d, v%d' % (T1, 56 * j, T0)), op('v_and_b32 v%d, 255, v%d' % (T1, T1)),
              op('v_add_u32 v%d, v%d, v%d' % (V_RA + j, T1, T2))]
    c += [label('L_pardone')]
    for rg in (1, 2):
        for j in range(4):
            c += [op('v_add_u32 v%d, 0x%x, v%d' % (V_RA + 4 * rg + j, 65536 * rg, V_RA + j))]
    c += lane_fields()
    c += [op('v_lshlrev_b32 v%d, 7, v%d' % (T0, KL)), op('v_lshl_add_u32 v%d, v%d, 5, v%d' % (T0, FB, T0)),
          op('v_add_u32 v%d, v%d, v%d' % (T0, T0, C8_)), op('v_lshrrev_b32 v%d, 1, v%d' % (T1, RP)),
          op('v_lshl_add_u32 v%d, v%d, 6, v%d' % (V_KVR, T1, T0)), op('v_xor_b32 v%d, 64, v%d' % (V_KVR + 1, V_KVR))]
    c += stamp('pro')
    return c


def ln_stats():
    c = []
    S0, S1, Q0, Q1, ONE = V_T, V_T + 1, V_T + 2, V_T + 3, V_T + 4
    c += [op('v_mov_b32 v%d, 0' % r) for r in (S0, S1, Q0, Q1)]
    c += [op('v_mov_b32 v%d, 0x3f803f80' % ONE)]

    def reads(i):
        return [lg('ds_read_b128 %s, v%d offset:%d' % (v(V_RAW + 16 * i + 4 * q, 4), V_XR + q, 4096 * i), ('raw', i))
                for q in range(4)]
    nkv0 = OPT.get('kv_early', 4)
    kvq = list(range(nkv0, 12))
    c += [wait(vm=('x', 0))] + stamp('x0') + reads(0)
    for i in range(7):
        if i < 6:
            c += [wait(vm=('x', i + 1))] + reads(i + 1)
        c += [wait(lg=('raw', i))]
        if i == 6:
            c += [op('s_barrier')]
            while kvq:
                c += dma_kv(kvq.pop(0))
            c += dma_kv(12) + dma_kv(13)
        body = []
        for r in range(16):
            x = V_RAW + 16 * i + r
            body += [op('v_dot2c_f32_bf16 v%d, v%d, v%d' % (S0 if r % 2 == 0 else S1, x, ONE)),
                     op('v_dot2c_f32_bf16 v%d, v%d, v%d' % (Q0 if r % 2 == 0 else Q1, x, x))]
        if i < 6:
            for _ in range(2):
                if kvq:
                    pos = 8 if _ == 0 else 24
                    body[pos:pos] = dma_kv(kvq.pop(0))
        c += body
    c += stamp('stats')
    c += [op('s_lshl_b32 s%d, s2, 2' % S_CNT), op('s_add_u32 s%d, s%d, s%d' % (S_CNT, S_CNT, S_W)),
          op('s_cmp_lg_u32 s%d, 0' % S_CNT), op('s_cbranch_scc1 L_notag2'),
          op('s_mov_b32 s%d, 0x9e3779b1' % S_CNT), op('v_mul_lo_u32 v%d, v%d, s%d' % (V_NONCE, V_NONCE, S_CNT)),
          op('v_add_u32 v%d, 0x7f4a7c15, v%d' % (V_NONCE, V_NONCE)), op('v_or_b32 v%d, 1, v%d' % (V_NONCE, V_NONCE)),
          op('v_mov_b32 v%d, 0' % V_POLL),
          op('global_store_dword v%d, v%d, s[%d:%d] sc1' % (V_PA, V_NONCE, P_WS, P_WS + 1)),
          op('global_store_dword v%d, v%d, s[%d:%d] sc1' % (V_POLL, V_NONCE, P_DBG, P_DBG + 1)),
          op('s_nop 1'),
          label('L_notag2')]
    T5, T6 = V_T + 5, V_T + 6
    c += [op('v_add_f32 v%d, v%d, v%d' % (S0, S0, S1)), op('v_add_f32 v%d, v%d, v%d' % (Q0, Q0, Q1)),
          op('v_mov_b32 v%d, v%d' % (S1, S0)), op('v_mov_b32 v%d, v%d' % (Q1, Q0)),
          op('v_permlane32_swap_b32 v%d, v%d' % (S0, S1)), op('v_permlane32_swap_b32 v%d, v%d' % (Q0, Q1)),
          op('v_add_f32 v%d, v%d, v%d' % (S0, S0, S1)), op('v_add_f32 v%d, v%d, v%d' % (Q0, Q0, Q1)),
          op('v_mul_f32 v%d, 0x%x, v%d' % (S0, INV448 ^ 0x80000000, S0)),
          op('v_mul_f32 v%d, 0x%x, v%d' % (Q0, INV448, Q0))]
    c += [op('v_mov_b32 v%d, v%d' % (V_CM + r, S0)) for r in range(16)]
    tail = [op('v_fma_f32 v%d, -v%d, v%d, v%d' % (Q0, S0, S0, Q0)),
            op('v_max_f32 v%d, 0, v%d' % (Q0, Q0)),
            op('v_add_f32 v%d, 0x%x, v%d' % (V_VV, EPS5, Q0)),
            op('v_rsq_f32 v%d, v%d' % (V_RS, V_VV)),
            op('v_and_b32 v%d, 31, v0' % T5), op('v_lshlrev_b32 v%d, 2, v%d' % (T5, T5)),
            op('v_mul_f32 v%d, 0x%x, v%d' % (V_RS2, LOG2E, V_RS)),
            op('v_mul_f32 v%d, 0x%x, v%d' % (V_C1, NLOG2E, V_RS)),
            op('s_lshl_b32 s%d, s%d, 8' % (S_TMP, S_W)), op('s_add_u32 s%d, s%d, %d' % (S_TMP, S_TMP, TAB)),
            op('v_add_u32 v%d, s%d, v%d' % (T5, S_TMP, T5)),
            lg('ds_write_b32 v%d, v%d' % (T5, V_RS), 'tabw'),
            lg('ds_write_b32 v%d, v%d offset:128' % (T5, V_RS2), 'tabw'),
            op('v_lshrrev_b32 v%d, 5, v0' % T6), op('v_lshlrev_b32 v%d, 4, v%d' % (T6, T6)),
            op('v_add_u32 v%d, s%d, v%d' % (T6, S_TMP, T6))]
    return c, tail


def centre_kv(tail):
    D = [V_D0, V_D1]
    T6 = V_T + 6
    c = []

    def cm(p):
        d = D[p & 1]
        return [mfma(v(d, 16), v(V_A1, 4), v(V_RAW + 8 * p, 4), v(V_CM, 16)),
                mfma(v(d, 16), v(V_A2, 4), v(V_RAW + 8 * p + 4, 4), v(d, 16))]

    def cp(p):
        d = D[p & 1]
        r = []
        for m in range(8):
            t = V_T + 8 + (m & 3)
            r += [op('v_cvt_pk_bf16_f32 v%d, v%d, v%d' % (t, d + 2 * m, d + 2 * m + 1)),
                  op('v_accvgpr_write_b32 a%d, v%d' % (A_XF + 8 * p + m, t))]
        return r
    stq = []
    for g in range(6):
        for ks in range(4):
            stq.append(dma(g, ks))
    late = []
    for p in range(16):
        side = []
        if p in (1, 2, 4, 8, 12):
            c += stamp('c%d' % p)
        if p == 0:
            side += tail
        if 1 <= p <= 14:
            side += cp(p - 1)
        if p == 14:
            for q in range(4):
                late += [lg('ds_read_b128 %s, v%d offset:%d' % (v(V_RST + 4 * q, 4), T6, 32 * q), 'tabr')]
        main = []
        if p < 14:
            ms = cm(p)
            main += [[ms[0]], [ms[1]]]
        if p == 1:
            main += [[wait(vm=('kv', 11)), op('s_barrier')] + rd_kv(0, 0, A_FR[0]) + rd_kv(0, 1, A_FR[0] + 4)]
        if p >= 2:
            for ks in (2 * (p - 2), 2 * (p - 2) + 1):
                cur, nxt = A_FR[ks & 1], A_FR[(ks + 1) & 1]
                pre = []
                if ks == 23:
                    pre += [wait(vm=('kv', 13)), op('s_barrier')]
                if ks == 27:
                    pre += [wait(vm=('st', 0)), op('s_barrier')]
                g0 = pre + [wait(lg=('kvf', ks, 0)), mfma(v(V_AK, 16), a(A_XF + 4 * ks, 4), a(cur, 4), v(V_AK, 16) if ks else '0')]
                g0 += rd_kv(ks + 1, 0, nxt) if ks < 27 else rd_st(0, 0, nxt) + rd_st(0, 1, nxt + 4)
                g1 = [wait(lg=('kvf', ks, 1)), mfma(v(V_AV, 16), a(A_XF + 4 * ks, 4), a(cur + 4, 4), v(V_AV, 16) if ks else '0')]
                g1 += rd_kv(ks + 1, 1, nxt + 4) if ks < 27 else rd_st(0, 2, nxt + 8) + rd_st(0, 3, nxt + 12)
                main += [g0, g1]
        ndma = 2 if p < 12 else 0
        if p == 0:
            ndma = 2
        d = []
        for _ in range(ndma):
            if stq:
                d.append(stq.pop(0))
        if p == 14:
            d += [dma(6, 0), dma(6, 1)]
        if p == 15:
            d += [dma(6, 2), dma(6, 3)]
        sidel = list(side)
        ng = len(main)
        per = (len(sidel) + ng - 1) // max(ng, 1)
        for gi, grp in enumerate(main):
            c += grp
            if d and gi >= (1 if p >= 2 else 0) and (p not in (14, 15) or gi >= 1):
                c += d.pop(0)
            c += sidel[:per]
            sidel = sidel[per:]
        for x in d:
            c += x
        c += sidel
        if p == 14:
            c += late
    assert not stq
    return c


def tab2_reads():
    T6 = V_T + 6
    return [lg('ds_read_b128 %s, v%d offset:%d' % (v(V_RS2T + 4 * q, 4), T6, 128 + 32 * q), 'tabr2') for q in range(4)]


def kv_epilogue_a():
    AK, AV = V_AK, V_AV
    T = V_T
    c = tab2_reads() + [wait(lg=['tabr', 'tabr2'])]
    for r in range(0, 16, 2):
        k0, k1 = AK + r, AK + r + 1
        c += [op('v_mul_f32 v%d, v%d, v%d' % (T, k0, V_RS2T + r)), op('v_mul_f32 v%d, v%d, v%d' % (T + 1, k1, V_RS2T + r + 1)),
              op('v_min_f32 v%d, 0, v%d' % (T, T)), op('v_min_f32 v%d, 0, v%d' % (T + 1, T + 1)),
              op('v_exp_f32 v%d, v%d' % (T, T)), op('v_exp_f32 v%d, v%d' % (T + 1, T + 1)),
              op('v_fmaak_f32 v%d, v%d, v%d, 0x%x' % (k0, k0, V_RST + r, EPS6)),
              op('v_fmaak_f32 v%d, v%d, v%d, 0x%x' % (k1, k1, V_RST + r + 1, EPS6)),
              op('v_max_f32 v%d, 0x%x, v%d' % (k0, EPS6, k0)), op('v_max_f32 v%d, 0x%x, v%d' % (k1, EPS6, k1)),
              op('v_mul_f32 v%d, v%d, v%d' % (AV + r, AV + r, V_RST + r)),
              op('v_mul_f32 v%d, v%d, v%d' % (AV + r + 1, AV + r + 1, V_RST + r + 1)),
              op('v_add_f32 v%d, v%d, v%d' % (k0, k0, T)), op('v_add_f32 v%d, v%d, v%d' % (k1, k1, T + 1)),
              op('v_cvt_pk_bf16_f32 v%d, v%d, v%d' % (V_RS2T + r // 2, AV + r, AV + r + 1)),
              op('v_cvt_pk_bf16_f32 v%d, v%d, v%d' % (T + 8 + r // 2, k0, k1))]
    PK, PV = T + 8, V_RS2T
    c += [op('v_and_b32 v%d, 31, v0' % T), op('v_cmp_gt_u32 vcc, 28, v%d' % T)]
    for m in range(8):
        c += [op('v_cndmask_b32 v%d, v%d, v%d, vcc' % (PV + m, V_CV, PV + m))]
    D = V_KVD
    c += [op('s_lshl_b32 s%d, s%d, 12' % (S_TMP, S_W)), op('v_add_u32 v%d, s%d, v%d' % (T, S_TMP, V_L16))]
    c += [mfma(v(D, 16), v(PK, 4), v(PV, 4), '0'), mfma(v(D, 16), v(PK + 4, 4), v(PV + 4, 4), v(D, 16))]
    w = [lg('ds_write_b128 v%d, %s offset:%d' % (T, v(D + 4 * q, 4), KVRED + 1024 * q), 'kvw') for q in range(4)]
    return c, w


def kv_epilogue_b():
    D = V_KVD
    T = V_T
    c = [op('v_add_u32 v%d, s%d, v%d' % (T, S_M0W, V_L16))]
    for wv in range(4):
        c += [lg('ds_read_b128 %s, v%d offset:%d' % (v(D + 4 * wv, 4), T, KVRED + 4096 * wv), 'kvr')]
    c += [op('s_lshl_b32 s%d, s%d, 4' % (S_TMP, S_HEAD)), op('s_add_u32 s%d, s%d, s%d' % (S_TMP, S_TMP, S_RB)),
          op('s_lshl_b32 s%d, s%d, 12' % (S_TMP, S_TMP)), op('s_add_u32 s%d, s%d, s%d' % (S_TMP, S_TMP, S_M0W)),
          op('s_add_u32 s%d, s%d, 0x%x' % (S_HO, S_TMP, KVP_OFF))]
    c += [wait(lg='kvr')]
    for r in range(4):
        c += [op('v_add_f32 v%d, v%d, v%d' % (D + r, D + r, D + 4 + r)),
              op('v_add_f32 v%d, v%d, v%d' % (D + 8 + r, D + 8 + r, D + 12 + r))]
    for r in range(4):
        c += [op('v_add_f32 v%d, v%d, v%d' % (D + r, D + r, D + 8 + r))]
    c += [vm('buffer_store_dwordx4 %s, v%d, s[%d:%d], s%d offen sc1' % (v(D, 4), V_L16, SWS, SWS + 3, S_HO), 'kvst')]
    return c


def nonce_issue():
    return [op('v_mov_b32 v%d, 0' % V_PA),
            vm('global_load_dword v%d, v%d, s[%d:%d] sc1' % (V_NONCE, V_PA, P_DBG, P_DBG + 1), 'nonce')]


def nonce_check():
    spin = [label('LS_nonce'), op('s_nop 4'), op('s_mov_b32 s%d, 0x%x' % (S_CNT, SPIN_LIMIT)), label('LS_nonce_l'),
            op('global_load_dword v%d, v%d, s[%d:%d] sc1' % (V_NONCE, V_PA, P_DBG, P_DBG + 1)),
            op('s_waitcnt vmcnt(0)'), op('v_cmp_eq_u32 vcc, 0, v%d' % V_NONCE),
            op('s_cbranch_vccz LB_nonce'), op('s_sleep 1'),
            op('s_sub_u32 s%d, s%d, 1' % (S_CNT, S_CNT)), op('s_cbranch_scc0 LS_nonce_l'), op('s_branch LB_nonce')]
    _spins.append(('nonce', spin))
    return [wait(vm='nonce'), op('v_cmp_eq_u32 vcc, 0, v%d' % V_NONCE), op('s_cbranch_vccnz LS_nonce'),
            label('LB_nonce'), op('s_nop 1'), op('v_readfirstlane_b32 s%d, v%d' % (S_NONCE, V_NONCE)), op('s_nop 1')]


def fp_flag():
    return [op('s_lshl_b32 s%d, s%d, 2' % (S_TMP, S_HEAD)), op('s_add_u32 s%d, s%d, s%d' % (S_TMP, S_TMP, S_W)),
            op('s_lshl_b32 s%d, s%d, 5' % (S_TMP, S_TMP)), op('s_add_u32 s%d, s%d, s%d' % (S_TMP, S_TMP, S_RB)),
            op('s_lshl_b32 s%d, s%d, 2' % (S_TMP, S_TMP)), op('s_add_u32 s%d, s%d, 0x%x' % (S_TMP, S_TMP, FP_OFF)),
            wait(vm='kvst')] + flag_store(S_TMP)


def kvred_1(sfx):
    c = [op('s_lshl_b32 s%d, s%d, 2' % (S_KR, S_HEAD)), op('s_lshr_b32 s%d, s%d, 2' % (S_TMP, S_RB)),
         op('s_add_u32 s%d, s%d, s%d' % (S_KR, S_KR, S_TMP)), op('s_lshl_b32 s%d, s%d, 7' % (S_KR, S_KR)),
         op('s_add_u32 s%d, s%d, 0x%x' % (S_KR, S_KR, FP_OFF)),
         op('v_and_b32 v%d, 15, v0' % V_PA), op('v_lshlrev_b32 v%d, 2, v%d' % (V_PA, V_PA))]
    c += poll_issue('pfp', S_KR)
    return c


def kvred_2(sfx):
    c = poll_check('pfp', 'fp' + sfx, S_KR)
    T = V_T + 4
    c += [op('v_lshrrev_b32 v%d, 2, v0' % T), op('v_lshlrev_b32 v%d, 12, v%d' % (T, T)),
          op('v_and_b32 v%d, 3, v0' % (T + 1)), op('v_lshl_add_u32 v%d, v%d, 4, v%d' % (T, T + 1, T)),
          op('s_lshl_b32 s%d, s%d, 16' % (S_KR, S_HEAD)), op('s_lshl_b32 s%d, s%d, 8' % (S_TMP, S_RB)),
          op('s_add_u32 s%d, s%d, s%d' % (S_KR, S_KR, S_TMP)), op('s_lshl_b32 s%d, s%d, 6' % (S_TMP, S_W)),
          op('s_add_u32 s%d, s%d, s%d' % (S_KR, S_KR, S_TMP)), op('s_add_u32 s%d, s%d, 0x%x' % (S_KR, S_KR, KVP_OFF)),
          vm('buffer_load_dwordx4 %s, v%d, s[%d:%d], s%d offen sc1' % (v(V_RED, 4), T, SWS, SWS + 3, S_KR), 'red')]
    return c


def kvred_3():
    R = V_RED
    T = V_T + 4
    c = [wait(vm='red')]
    for rot in (8, 4):
        for r in range(4):
            c += [op('v_add_f32_dpp v%d, v%d, v%d row_ror:%d row_mask:0xf bank_mask:0xf' % (R + r, R + r, R + r, rot))]
    for mn in ('v_permlane16_swap_b32', 'v_permlane32_swap_b32'):
        for r in range(4):
            c += [op('v_mov_b32 v%d, v%d' % (T + r, R + r))]
        for r in range(4):
            c += [op('%s v%d, v%d' % (mn, R + r, T + r))]
        for r in range(4):
            c += [op('v_add_f32 v%d, v%d, v%d' % (R + r, R + r, T + r))]
    c += [op('v_cvt_pk_bf16_f32 v%d, v%d, v%d' % (R, R, R + 1)), op('v_cvt_pk_bf16_f32 v%d, v%d, v%d' % (R + 1, R + 2, R + 3)),
          op('s_cmp_ge_u32 s%d, 14' % S_RB), op('s_cselect_b32 s%d, 0, -1' % S_TMP),
          op('v_and_b32 v%d, s%d, v%d' % (R, S_TMP, R)), op('v_and_b32 v%d, s%d, v%d' % (R + 1, S_TMP, R + 1)),
          op('v_and_b32 v%d, 3, v0' % T), op('v_lshlrev_b32 v%d, 4, v%d' % (T, T)),
          op('s_lshl_b32 s%d, s%d, 11' % (S_KR, S_HEAD)),
          op('s_lshr_b32 s%d, s%d, 3' % (S_TMP, S_RB)), op('s_lshl_b32 s%d, s%d, 10' % (S_TMP, S_TMP)),
          op('s_add_u32 s%d, s%d, s%d' % (S_KR, S_KR, S_TMP)),
          op('s_and_b32 s%d, s%d, 3' % (S_TMP, S_RB)), op('s_lshl_b32 s%d, s%d, 8' % (S_TMP, S_TMP)),
          op('s_add_u32 s%d, s%d, s%d' % (S_KR, S_KR, S_TMP)),
          op('s_lshl_b32 s%d, s%d, 6' % (S_TMP, S_W)), op('s_add_u32 s%d, s%d, s%d' % (S_KR, S_KR, S_TMP)),
          op('s_bfe_u32 s%d, s%d, 0x10002' % (S_TMP, S_RB)), op('s_lshl_b32 s%d, s%d, 3' % (S_TMP, S_TMP)),
          op('s_add_u32 s%d, s%d, s%d' % (S_KR, S_KR, S_TMP)), op('s_add_u32 s%d, s%d, 0x%x' % (S_KR, S_KR, KVF_OFF)),
          vm('buffer_store_dwordx2 %s, v%d, s[%d:%d], s%d offen sc1' % (v(R, 2), T, SWS, SWS + 3, S_KR), 'kvf')]
    return c


def fr_flag():
    return [op('s_lshl_b32 s%d, s%d, 4' % (S_TMP, S_HEAD)), op('s_add_u32 s%d, s%d, s%d' % (S_TMP, S_TMP, S_RB)),
            op('s_lshl_b32 s%d, s%d, 2' % (S_TMP, S_TMP)), op('s_add_u32 s%d, s%d, s%d' % (S_TMP, S_TMP, S_W)),
            op('s_lshl_b32 s%d, s%d, 2' % (S_TMP, S_TMP)), op('s_add_u32 s%d, s%d, 0x%x' % (S_TMP, S_TMP, FR_OFF)),
            wait(vm='kvf')] + flag_store(S_TMP)


def fh_flag(st, tag):
    return [op('s_lshl_b32 s%d, s%d, 1' % (S_TMP, S_T)), op('s_add_u32 s%d, s%d, s%d' % (S_TMP, S_TMP, S_XH)),
            op('s_lshl_b32 s%d, s%d, 5' % (S_TMP, S_TMP)), op('s_add_u32 s%d, s%d, s%d' % (S_TMP, S_TMP, S_C8)),
            op('s_lshl_b32 s%d, s%d, 2' % (S_TMP, S_TMP)), op('s_add_u32 s%d, s%d, 0x%x' % (S_TMP, S_TMP, FH_OFF + 32 * st)),
            wait(vm=tag)] + flag_store(S_TMP)


def gu_epilogue(st):
    acc = V_ACC[st]
    T = V_T
    c = [op('s_mul_i32 s%d, s%d, 114688' % (S_HO, S_T)),
         op('s_mul_i32 s%d, s%d, 57344' % (S_TMP, S_XH)), op('s_add_u32 s%d, s%d, s%d' % (S_HO, S_HO, S_TMP)),
         op('s_lshl_b32 s%d, s%d, 12' % (S_TMP, S_C8)), op('s_add_u32 s%d, s%d, s%d' % (S_HO, S_HO, S_TMP)),
         op('s_add_u32 s%d, s%d, %d' % (S_HO, S_HO, H_OFF + st * 28672))]
    for j in range(4):
        b = acc + 16 * j
        P = T + 8
        for r in range(0, 8, 2):
            g0, g1, u0, u1 = b + r, b + r + 1, b + 8 + r, b + 9 + r
            c += [op('v_mul_f32 v%d, v%d, v%d' % (T, g0, V_C1)), op('v_mul_f32 v%d, v%d, v%d' % (T + 1, g1, V_C1)),
                  op('v_exp_f32 v%d, v%d' % (T, T)), op('v_exp_f32 v%d, v%d' % (T + 1, T + 1)),
                  op('v_mul_f32 v%d, v%d, v%d' % (T + 2, g0, u0)), op('v_mul_f32 v%d, v%d, v%d' % (T + 3, g1, u1)),
                  op('v_fma_f32 v%d, v%d, v%d, v%d' % (T, T, V_VV, V_VV)),
                  op('v_fma_f32 v%d, v%d, v%d, v%d' % (T + 1, T + 1, V_VV, V_VV)),
                  op('v_rcp_f32 v%d, v%d' % (T, T)), op('v_rcp_f32 v%d, v%d' % (T + 1, T + 1)),
                  op('s_nop 0') if False else op('v_mul_f32 v%d, v%d, v%d' % (T + 2, T + 2, T)),
                  op('v_mul_f32 v%d, v%d, v%d' % (T + 3, T + 3, T + 1)),
                  op('v_cvt_pk_bf16_f32 v%d, v%d, v%d' % (P + (j & 1) * 4 + r // 2, T + 2, T + 3))]
        c += [vm('buffer_store_dwordx4 %s, v%d, s[%d:%d], s%d offen offset:%d sc1' % (
            v(P + (j & 1) * 4, 4), V_L16, SWS, SWS + 3, S_HO, 1024 * j), ('hst', st))]
    return c


def q_epilogue(st):
    acc = V_ACC[st]
    T = V_T
    c = [op('s_lshl_b32 s%d, s%d, 15' % (S_HO, S_T)),
         op('s_lshl_b32 s%d, s%d, 14' % (S_TMP, S_XH)), op('s_add_u32 s%d, s%d, s%d' % (S_HO, S_HO, S_TMP)),
         op('s_add_u32 s%d, s%d, 0x%x' % (S_HO, S_HO, PQ_OFF + st * 8192))]
    for j in range(4):
        b = acc + 16 * j
        P = T + 8
        for r in range(0, 16, 2):
            x0, x1 = b + r, b + r + 1
            c += [op('v_mul_f32 v%d, v%d, v%d' % (T, x0, V_RS2)), op('v_mul_f32 v%d, v%d, v%d' % (T + 1, x1, V_RS2)),
                  op('v_min_f32 v%d, 0, v%d' % (T, T)), op('v_min_f32 v%d, 0, v%d' % (T + 1, T + 1)),
                  op('v_exp_f32 v%d, v%d' % (T, T)), op('v_exp_f32 v%d, v%d' % (T + 1, T + 1)),
                  op('v_fmaak_f32 v%d, v%d, v%d, 0x%x' % (x0, x0, V_RS, EPS6)),
                  op('v_fmaak_f32 v%d, v%d, v%d, 0x%x' % (x1, x1, V_RS, EPS6)),
                  op('v_max_f32 v%d, 0x%x, v%d' % (x0, EPS6, x0)), op('v_max_f32 v%d, 0x%x, v%d' % (x1, EPS6, x1)),
                  op('v_add_f32 v%d, v%d, v%d' % (x0, x0, T)), op('v_add_f32 v%d, v%d, v%d' % (x1, x1, T + 1)),
                  op('v_cvt_pk_bf16_f32 v%d, v%d, v%d' % (P + r // 2, x0, x1))]
        c += [op('v_and_b32 v%d, v%d, v%d' % (P + 6, V_MLO, P + 6)), op('v_and_b32 v%d, v%d, v%d' % (P + 7, V_MLO, P + 7))]
        if j == 2:
            c += [op('s_add_u32 s%d, s%d, 4096' % (S_HO, S_HO))]
        o = (j & 1) * 2048
        c += [vm('buffer_store_dwordx4 %s, v%d, s[%d:%d], s%d offen offset:%d sc1' % (v(P, 4), V_L16, SWS, SWS + 3, S_HO, o), ('hst', st)),
              vm('buffer_store_dwordx4 %s, v%d, s[%d:%d], s%d offen offset:%d sc1' % (v(P + 4, 4), V_L16, SWS, SWS + 3, S_HO, o + 1024), ('hst', st))]
    return c


def count_ops(lst):
    return sum(1 for x in lst if x.kind not in ('wait', 'label'))


def take(side, n):
    out = []
    while side and n > 0:
        x = side.pop(0)
        out.append(x)
        if x.kind not in ('wait', 'label'):
            n -= 1
    while side and side[0].kind == 'label':
        out.append(side.pop(0))
    return out


def st_loop(st, plan, with_b_dma, next_reads):
    acc = V_ACC[st]
    c = []
    side = []
    for ks in range(28):
        gk = 28 * st + ks
        par = gk & 1
        cur, nxt = A_FR[par], A_FR[par ^ 1]
        side += plan.get(ks, [])
        if ks in (4, 8, 12, 16, 20, 24):
            c += stamp('s%d_%d' % (st, ks))
        if (gk & 3) == 3:
            g = (gk + 1) >> 2
            if g < NCH_A or with_b_dma:
                c += plan.get('pre_bar', {}).get(ks, [])
                c += [wait(vm=('st', g)), op('s_barrier')]
        g_now = gk >> 2
        d = []
        if g_now + 7 < NCH_A or (with_b_dma and g_now + 7 < NCH):
            d = dma(g_now + 7, gk & 3)
        rate = plan['rate'](ks)
        q = [rate // 4 + (1 if i < rate % 4 else 0) for i in range(4)]
        q = [q[0], q[3], q[1], q[2]]
        for j in range(4):
            if j in (0, 2):
                c += [wait(lg=[('stf', gk, j), ('stf', gk, j + 1)])]
            c += [mfma(v(acc + 16 * j, 16), a(cur + 4 * j, 4), a(A_XF + 4 * ks, 4), v(acc + 16 * j, 16) if ks else '0')]
            if gk + 1 < 56:
                c += rd_st(gk + 1, j, nxt + 4 * j)
            elif next_reads and j < 2:
                c += next_reads[j]
            if j == 1:
                c += d
            c += take(side, q[j])
    return c, side


def b_setup():
    T0, T1, T2, T3 = V_T + 4, V_T + 5, V_T + 6, V_T + 7
    c = [op('s_mul_i32 s%d, s%d, 37' % (S_TMP, S_IDX)), op('s_lshr_b32 s%d, s%d, 8' % (S_TMP, S_TMP)),
         op('s_mul_i32 s%d, s%d, 7' % (S_TMP2, S_TMP)), op('s_sub_u32 s%d, s%d, s%d' % (B_NB, S_IDX, S_TMP2)),
         op('s_and_b32 s%d, s2, 7' % B_T), op('s_lshl_b32 s%d, s%d, 2' % (B_T, B_T)),
         op('s_add_u32 s%d, s%d, s%d' % (B_T, B_T, S_TMP)),
         op('s_and_b32 s%d, s%d, 1' % (B_TG, S_W)), op('s_lshr_b32 s%d, s%d, 1' % (B_KH, S_W)),
         op('s_lshl_b32 s%d, s%d, 1' % (B_T, B_T)), op('s_add_u32 s%d, s%d, s%d' % (B_T, B_T, B_TG))]
    c += srd(SD, P_WD, WD_BYTES) + srd(SO, P_WO, WO_BYTES) + srd(SOUT, P_OUT, X_BYTES)
    c += [op('v_lshrrev_b32 v%d, 3, v0' % T0), op('v_mul_u32_u24 v%d, 896, v%d' % (BV_WO, T0)),
          op('v_lshrrev_b32 v%d, 1, v%d' % (T1, T0)), op('v_lshrrev_b32 v%d, 2, v0' % T2),
          op('v_xor_b32 v%d, v%d, v%d' % (T1, T1, T2)), op('v_and_b32 v%d, 1, v%d' % (T1, T1)),
          op('v_lshlrev_b32 v%d, 6, v%d' % (T1, T1)),
          op('v_and_b32 v%d, 3, v0' % T2), op('v_lshlrev_b32 v%d, 4, v%d' % (T2, T2)),
          op('v_add3_u32 v%d, v%d, v%d, v%d' % (BV_WO, BV_WO, T1, T2))]
    c += [op('s_lshl_b32 s%d, s%d, 7' % (B_WOF, B_NB)),
          op('s_mul_i32 s%d, s%d, %d' % (S_TMP, B_TG, 8 * 896)), op('s_add_u32 s%d, s%d, s%d' % (B_WOF, B_WOF, S_TMP)),
          op('s_mul_i32 s%d, s%d, %d' % (S_TMP, B_KH, 224 * 896)), op('s_add_u32 s%d, s%d, s%d' % (B_WOF2, B_WOF, S_TMP)),
          op('s_mul_i32 s%d, s%d, %d' % (S_TMP, B_KH, 896 * 896)), op('s_add_u32 s%d, s%d, s%d' % (B_WOF, B_WOF, S_TMP))]
    RP, FB, KL, C8_ = T0, T1, T2, T3
    c += [op('v_bfe_u32 v%d, v0, 2, 2' % RP), op('v_bfe_u32 v%d, v0, 4, 1' % FB),
          op('v_lshrrev_b32 v%d, 5, v0' % KL), op('v_lshl_add_u32 v%d, v%d, 2, v%d' % (KL, KL, RP)),
          op('v_and_b32 v%d, 3, v0' % C8_), op('v_lshlrev_b32 v%d, 3, v%d' % (C8_, C8_)),
          op('v_lshlrev_b32 v%d, 7, v%d' % (KL, KL)), op('v_lshl_add_u32 v%d, v%d, 5, v%d' % (KL, FB, KL)),
          op('v_add_u32 v%d, v%d, v%d' % (KL, KL, C8_)),
          op('v_lshrrev_b32 v%d, 1, v%d' % (RP, RP)), op('v_lshl_add_u32 v%d, v%d, 6, v%d' % (KL, RP, KL)),
          op('s_lshl_b32 s%d, s%d, 11' % (S_TMP, B_KH)),
          op('v_add_u32 v%d, s%d, v%d' % (BV_RA, S_TMP, KL)), op('v_xor_b32 v%d, 64, v%d' % (BV_RA + 1, BV_RA))]
    for rg in (1, 2):
        for j in range(2):
            c += [op('v_add_u32 v%d, 0x%x, v%d' % (BV_RA + 2 * rg + j, 65536 * rg, BV_RA + j))]
    c += [op('v_and_b32 v%d, 31, v0' % T0), op('v_mul_u32_u24 v%d, 896, v%d' % (BV_XO, T0)),
          op('v_lshrrev_b32 v%d, 5, v0' % T1), op('v_lshl_add_u32 v%d, v%d, 3, v%d' % (BV_XO, T1, BV_XO))]
    return c


def b_setup2():
    return [op('s_mul_i32 s%d, s%d, 114688' % (B_HO, B_T)), op('s_mul_i32 s%d, s%d, 57344' % (S_TMP, B_KH)),
            op('s_add_u32 s%d, s%d, s%d' % (B_HO, B_HO, S_TMP)),
            op('s_mul_i32 s%d, s%d, %d' % (B_XO, B_T, 32 * 896)), op('s_lshl_b32 s%d, s%d, 7' % (S_TMP, B_NB)),
            op('s_add_u32 s%d, s%d, s%d' % (B_XO, B_XO, S_TMP)), op('s_lshl_b32 s%d, s%d, 6' % (S_TMP, B_KH)),
            op('s_add_u32 s%d, s%d, s%d' % (B_XO, B_XO, S_TMP)),
            op('s_lshl_b32 s%d, s%d, 1' % (B_FH, B_T)), op('s_add_u32 s%d, s%d, s%d' % (B_FH, B_FH, B_KH)),
            op('s_lshl_b32 s%d, s%d, 7' % (B_FH, B_FH)), op('s_add_u32 s%d, s%d, 0x%x' % (B_FH, B_FH, FH_OFF))]


def pa_h():
    return [op('v_and_b32 v%d, 7, v0' % V_PA), op('v_min_u32 v%d, 6, v%d' % (V_PA, V_PA)),
            op('v_lshlrev_b32 v%d, 2, v%d' % (V_PA, V_PA))]


def phase_b():
    c = []
    T = V_T
    order = BORDER
    side = []
    extra = {}

    def rel(p, lst):
        extra.setdefault(p, []).extend(lst)

    rel(4, [op('s_lshl_b32 s%d, s%d, 11' % (B_KO, B_KH)), op('s_add_u32 s%d, s%d, 0x%x' % (B_KO, B_KO, FR_OFF)),
            op('v_mov_b32 v%d, v%d' % (V_PA, V_L16))] + poll_issue('pfr0', B_KO, 4, 0, V_POLL) + poll_issue('pfr1', B_KO, 4, 1024, V_T + 12))
    rel(10, poll_check('pfr0', 'fr0', B_KO, 4, 0, V_POLL) + poll_check('pfr1', 'fr1', B_KO, 4, 1024, V_T + 12))
    kvl = [op('s_lshl_b32 s%d, s%d, 14' % (B_KO, B_KH)), op('s_add_u32 s%d, s%d, 0x%x' % (B_KO, B_KO, KVF_OFF))]
    for i in range(16):
        if i and (i & 3) == 0:
            kvl += [op('s_add_u32 s%d, s%d, 4096' % (B_KO, B_KO))]
        kvl += [vm('buffer_load_dwordx4 %s, v%d, s[%d:%d], s%d offen offset:%d sc1' % (
            a(ba_kv(i >> 1) + 4 * (i & 1), 4), V_L16, SWS, SWS + 3, B_KO, 1024 * (i & 3)), ('kvl', i >> 3))]
    rel(11, kvl)
    rel(14, [op('v_mov_b32 v%d, 28' % V_PA)] + poll_issue('pq0', B_FH, 1, 0))

    def pql(half):
        r = [op('s_lshl_b32 s%d, s%d, 15' % (B_PO, B_T)), op('s_lshl_b32 s%d, s%d, 14' % (S_TMP, B_KH)),
             op('s_add_u32 s%d, s%d, s%d' % (B_PO, B_PO, S_TMP)),
             op('s_add_u32 s%d, s%d, 0x%x' % (B_PO, B_PO, PQ_OFF + half * 8192))]
        for i in range(8):
            if i == 4:
                r += [op('s_add_u32 s%d, s%d, 4096' % (B_PO, B_PO))]
            r += [vm('buffer_load_dwordx4 %s, v%d, s[%d:%d], s%d offen offset:%d sc1' % (
                a(BA_PQ + 32 * half + 4 * i, 4), V_L16, SWS, SWS + 3, B_PO, 1024 * (i & 3)), ('pql', half))]
        return r
    rel(20, poll_check('pq0', 'pq0', B_FH, 1, 0) + pql(0))
    rel(22, pa_h() + poll_issue('ph1', B_FH, 1, 32))
    h2 = poll_check('ph1', 'h1', B_FH, 1, 32)
    rel(46, [op('v_mov_b32 v%d, 28' % V_PA)] + poll_issue('pq1', B_FH, 1, 32))
    rel(54, poll_check('pq1', 'pq1', B_FH, 1, 32) + pql(1))
    xl = [vm('buffer_load_dwordx2 %s, v%d, s[%d:%d], s%d offen offset:%d' % (v(BV_X + 2 * q, 2), BV_XO, SX, SX + 3, B_XO, 16 * q), 'xr') for q in range(4)]
    rel(40, xl)
    rel(8, fh_flag(1, ('hst', 1)))

    def hl(n):
        r = []
        if (n & 3) == 0:
            r += [op('s_add_u32 s%d, s%d, 0x%x' % (S_HS2, B_HO, 1024 * n))]
        r += [vm('buffer_load_dwordx4 %s, v%d, s[%d:%d], s%d offen offset:%d sc1' % (
            a(BA_H + 4 * (n % 28), 4), V_L16, SWS, SWS + 3, S_HS2, 1024 * (n & 3)), ('h', n))]
        return r

    first_f, first_s = True, True
    h2q = []
    for p in range(72):
        kind, n = order[p]
        cur, nxt = BA_FR[p & 1], BA_FR[(p + 1) & 1]
        g = NCH_A + (p >> 2)
        side += extra.get(p, [])
        if (p & 3) == 3 and p + 1 < 72:
            c += [wait(vm=('st', g + 1)), op('s_barrier')]
        if p in (4, 8, 12, 16, 20, 24, 28, 36, 44, 52, 64):
            c += stamp('b%d' % p)
        if p == 27:
            c += side
            side = []
            c += h2
            for m in range(28, 56):
                h2q.append(hl(m))
        pre = []
        if kind == 's':
            hd, half = n >> 1, n & 1
            if half == 0:
                N = BV_N
                TT = V_T
                pre += [wait(vm=[('pql', hd >> 2), ('kvl', hd >> 2)])]
                pre += [mfma(v(N, 16), a(ba_kv(hd), 4), a(BA_PQ + 8 * hd, 4), '0'),
                        mfma(v(N, 16), a(ba_kv(hd) + 4, 4), a(BA_PQ + 8 * hd + 4, 4), v(N, 16))]
                fill = []
                for _ in range(4):
                    if h2q:
                        fill += h2q.pop(0)
                pre += fill
                pre += [op('v_mov_b32 v%d, v%d' % (TT, N + 12)), op('v_mov_b32 v%d, v%d' % (TT + 1, N + 12)),
                        op('v_permlane32_swap_b32 v%d, v%d' % (TT, TT + 1)),
                        op('v_add_f32 v%d, 0x%x, v%d' % (TT + 1, EPS6, TT + 1)),
                        op('v_rcp_f32 v%d, v%d' % (TT + 1, TT + 1))]
                for r in range(16):
                    pre += [op('v_mul_f32 v%d, v%d, v%d' % (N + r, N + r, TT + 1))]
                for r in range(8):
                    pre += [op('v_cvt_pk_bf16_f32 v%d, v%d, v%d' % (TT + 4 + r if False else V_OF + r, N + 2 * r, N + 2 * r + 1))]
                pre += [op('v_and_b32 v%d, v%d, v%d' % (V_OF + 6, V_MLO, V_OF + 6)),
                        op('v_and_b32 v%d, v%d, v%d' % (V_OF + 7, V_MLO, V_OF + 7))]
            Bop = v(V_OF + 4 * half, 4)
            acc, first = BV_S, first_s
            first_s = False
        else:
            pre += [wait(vm=('h', n))]
            Bop = a(BA_H + 4 * (n % 28), 4)
            acc, first = BV_F, first_f
            first_f = False
        c += pre
        d = dma(g + 7, p & 3) if g + 7 < NCH else []
        for j in range(2):
            c += [wait(lg=('wf', p, j))]
            c += [mfma(v(acc + 16 * j, 16), a(cur + 4 * j, 4), Bop, '0' if first else v(acc + 16 * j, 16))]
            if p + 1 < 72:
                c += rd_b(p + 1, j, nxt + 4 * j)
            if j == 0:
                c += d
            c += take(side, 6)
        if kind == 's' and h2q:
            for _ in range(3 if (n & 1) else 0):
                if h2q:
                    c += h2q.pop(0)
        if p == 35:
            while h2q:
                c += h2q.pop(0)
    c += side
    c += stamp('bloop')
    c += [op('s_barrier'), op('s_nop 7'), op('s_nop 7')]
    c += [op('s_lshl_b32 s%d, s%d, 13' % (S_TMP, S_W)), op('v_add_u32 v%d, s%d, v%d' % (T, S_TMP, V_L16)),
          op('s_xor_b32 s%d, s%d, 2' % (S_TMP, S_W)), op('s_lshl_b32 s%d, s%d, 13' % (S_TMP, S_TMP)),
          op('v_add_u32 v%d, s%d, v%d' % (T + 1, S_TMP, V_L16)),
          op('s_cmp_eq_u32 s%d, 0' % B_KH), op('s_cbranch_scc1 L_k0')]
    for q in range(4):
        c += [lg('ds_write_b128 v%d, %s offset:%d' % (T, v(BV_F + 4 * q, 4), 1024 * q), 'xw'),
              lg('ds_write_b128 v%d, %s offset:%d' % (T, v(BV_S + 4 * q, 4), 4096 + 1024 * q), 'xw')]
    c += [wait(lg='xw')]
    for r in range(16):
        c += [op('v_mov_b32 v%d, v%d' % (BV_F + r, BV_F + 16 + r)), op('v_mov_b32 v%d, v%d' % (BV_S + r, BV_S + 16 + r))]
    c += [op('s_branch L_k1'), label('L_k0')]
    for q in range(4):
        c += [lg('ds_write_b128 v%d, %s offset:%d' % (T, v(BV_F + 16 + 4 * q, 4), 1024 * q), 'xw'),
              lg('ds_write_b128 v%d, %s offset:%d' % (T, v(BV_S + 16 + 4 * q, 4), 4096 + 1024 * q), 'xw')]
    c += [op('s_waitcnt lgkmcnt(0)'), label('L_k1'), op('s_waitcnt lgkmcnt(0)'), op('s_barrier')]
    for q in range(4):
        c += [lg('ds_read_b128 %s, v%d offset:%d' % (v(BV_F + 16 + 4 * q, 4), T + 1, 1024 * q), 'xr2'),
              lg('ds_read_b128 %s, v%d offset:%d' % (v(BV_S + 16 + 4 * q, 4), T + 1, 4096 + 1024 * q), 'xr2')]
    c += [wait(lg='xr2', vm='xr')]
    for r in range(16):
        c += [op('v_add_f32 v%d, v%d, v%d' % (BV_F + r, BV_F + r, BV_F + 16 + r)),
              op('v_add_f32 v%d, v%d, v%d' % (BV_S + r, BV_S + r, BV_S + 16 + r))]
    for r in range(0, 16, 2):
        f0, f1, s0, s1 = BV_F + r, BV_F + r + 1, BV_S + r, BV_S + r + 1
        xr = BV_X + r // 2
        c += [op('v_mul_f32 v%d, 0x%x, v%d' % (T, NLOG2E, f0)), op('v_mul_f32 v%d, 0x%x, v%d' % (T + 1, NLOG2E, f1)),
              op('v_exp_f32 v%d, v%d' % (T, T)), op('v_exp_f32 v%d, v%d' % (T + 1, T + 1)),
              op('v_mul_f32 v%d, v%d, v%d' % (s0, s0, f0)), op('v_mul_f32 v%d, v%d, v%d' % (s1, s1, f1)),
              op('v_add_f32 v%d, 1.0, v%d' % (T, T)), op('v_add_f32 v%d, 1.0, v%d' % (T + 1, T + 1)),
              op('v_rcp_f32 v%d, v%d' % (T, T)), op('v_rcp_f32 v%d, v%d' % (T + 1, T + 1)),
              op('v_lshlrev_b32 v%d, 16, v%d' % (T + 2, xr)), op('v_and_b32 v%d, 0xffff0000, v%d' % (T + 3, xr)),
              op('v_fma_f32 v%d, v%d, v%d, v%d' % (T + 2, s0, T, T + 2)),
              op('v_fma_f32 v%d, v%d, v%d, v%d' % (T + 3, s1, T + 1, T + 3)),
              op('v_cvt_pk_bf16_f32 v%d, v%d, v%d' % (xr, T + 2, T + 3))]
    for q in range(4):
        c += [vm('buffer_store_dwordx2 %s, v%d, s[%d:%d], s%d offen offset:%d' % (v(BV_X + 2 * q, 2), BV_XO, SOUT, SOUT + 3, B_XO, 16 * q), 'o')]
    c += stamp('end')
    return c, hl


V_OF = 96


def build():
    del _spins[:]
    del _stamps[:]
    pro = prologue()
    stats, tail = ln_stats()
    ckv = centre_kv(tail) + stamp('kvloop')

    kva, kvw = kv_epilogue_a()
    plan1 = {0: nonce_issue() + list(kva) + list(kvw), 'rate': lambda ks: 14 if ks < 11 else 8, 'pre_bar': {}}
    plan1['pre_bar'][15] = [wait(lg='kvw')]
    plan1[15] = kv_epilogue_b()
    plan1[20] = nonce_check()
    plan1[26] = fp_flag()
    st1, rest1 = st_loop(0, plan1, False, None)
    common = pro + stats + ckv + st1 + rest1 + stamp('st0')

    bsetup = b_setup()
    pb, hl = phase_b()
    r0 = OPT.get('rate_e0', 24)
    planf = {'rate': lambda ks: r0 if ks < 10 else 10, 'pre_bar': {}}
    e0 = gu_epilogue(0)
    planf[0] = e0[:165] + kvred_1('f') + e0[165:]
    planf[12] = kvred_2('f')
    planf[17] = fh_flag(0, ('hst', 0))
    planf[18] = kvred_3()
    planf[24] = b_setup2h() + pa_h() + poll_issue('ph0', B_FH, 1, 0)
    planf[26] = fr_flag()
    nr = [rd_b(0, 0, BA_FR[0]), rd_b(0, 1, BA_FR[0] + 4)]
    st2f, restf = st_loop(1, planf, True, nr)
    fpath = bsetup + st2f + restf + stamp('st1')
    epi = gu_epilogue(1)
    hq = [hl(n) for n in range(28)]
    out = take(epi, OPT.get('h0_after', 60))
    out += poll_check('ph0', 'h0', B_FH, 1, 0)
    while epi or hq:
        if hq:
            out += hq.pop(0)
        out += take(epi, 5)
    fpath += out + stamp('epi1') + pb + stamp_flush() + [label('L_done'), op('s_endpgm')]

    planq = {'rate': lambda ks: 19, 'pre_bar': {}}
    q0 = q_epilogue(0)
    planq[0] = q0[:110] + kvred_1('q') + q0[110:220] + kvred_2('q') + q0[220:330] + kvred_3() + q0[330:]
    planq[26] = fr_flag()
    st2q, restq = st_loop(1, planq, False, None)
    qpath = st2q + restq + stamp('st1')
    qe = q_epilogue(1)
    qpath += qe[:110] + fh_flag(0, ('hst', 0)) + qe[110:] + fh_flag(1, ('hst', 1))
    qpath += stamp('epi1') + stamp('end') + stamp_flush() + [op('s_endpgm')]

    branch = [op('s_cmp_eq_u32 s%d, 7' % S_C8), op('s_cbranch_scc1 L_attn')]
    st = {}
    seq_f = resolve_waits(common + branch + fpath)
    seq_q = resolve_waits(common + [I('<mark>', 'raw')] + qpath)
    kq = [i for i, x in enumerate(seq_q) if x.txt == '<mark>'][0]
    seq_q = [label('L_attn'), op('s_nop 7'), op('s_nop 7')] + seq_q[kq + 1:]
    txt = render(pad_hazards(seq_f, stats=st)) + render(pad_hazards(seq_q, stats=st))
    for name, sp in _spins:
        txt += render(pad_hazards(sp))
    return txt, st


def b_setup2h():
    return b_setup2()


def descriptor(name, nv, acc, ns=102):
    return '''.section .rodata,"a"
.p2align 6
.amdhsa_kernel %s
  .amdhsa_next_free_vgpr %d
  .amdhsa_next_free_sgpr %d
  .amdhsa_accum_offset %d
  .amdhsa_group_segment_fixed_size 0
  .amdhsa_kernarg_size 80
  .amdhsa_user_sgpr_count 2
  .amdhsa_user_sgpr_kernarg_segment_ptr 1
  .amdhsa_system_sgpr_workgroup_id_x 1
  .amdhsa_float_denorm_mode_32 3
.end_amdhsa_kernel
''' % (name, nv, ns, acc)


def main(path):
    body, st = build()
    hdr = '''; linear attention + SwiGLU block, one launch
; @launch grid=(256,1,1) block=(256,1,1) lds=%d
.amdgcn_target "amdgcn-amd-amdhsa--gfx950"
.text
.globl %s
.p2align 8
.type %s,@function
%s:
''' % (LDS_BYTES, NAME, NAME, NAME)
    txt = hdr + body + descriptor(NAME, 512, 256)
    open(path, 'w').write(txt)
    print('nops', st.get('nops'), st.get('nop_states'), 'bytes', len(txt))
    if PROF:
        print('stamps', _stamps)
        open(path.replace('.s', '.stamps'), 'w').write(repr(_stamps))
    if OPT.get('shownops'):
        for x in st.get('where', []):
            print(x)


if __name__ == '__main__':
    args = sys.argv[1:]
    path = args[0]
    for x in args[1:]:
        if x == 'prof':
            PROF = True
        elif x.startswith('set='):
            PROF = True
            PROF_SET = x[4:].split(',')
        elif '=' in x:
            k, val = x.split('=')
            OPT[k] = int(val)
    main(path)
```
